```python
import torch

def _softmax(x, axis=-1):
    return torch.softmax(x, dim=axis)
def _gelu(x):
    return torch.nn.functional.gelu(x, approximate="tanh")
def _silu(x):
    return torch.nn.functional.silu(x)
def _sigmoid(x):
    return torch.sigmoid(x)
def _layernorm(x, axis=-1, eps=1e-5):
    m = x.mean(dim=axis, keepdim=True)
    v = x.var(dim=axis, keepdim=True, unbiased=False)
    return (x - m) / torch.sqrt(v + eps)
def _scatter_add(tgt, idx, src, axis=0):
    return tgt.clone().index_add_(axis, idx, src)
def _segment_sum(src, seg, n):
    out = torch.zeros((n,) + src.shape[1:], dtype=src.dtype)
    return out.index_add_(0, seg, src)
def _pad(x, pw):
    flat = tuple(v for pair in reversed(pw) for v in pair)
    return torch.nn.functional.pad(x, flat)

kernel_name = 'interleave_layers__grouped_kv_mqa__dense_activation_gelu__prompt'

def setup_inputs():

    _w = (lambda a: (lambda t: t.to(torch.bfloat16) if t.is_floating_point() else t)(torch.as_tensor(a)))
    def _A_setup():
        B, S, D, H = 1, 2048, 640, 32
        Dh = D // H
        return {
            "x": _w((lambda *s: torch.randn(*s, dtype=torch.bfloat16) * 0.05)(B, S, D)),
            "wq": _w((lambda *s: torch.randn(*s, dtype=torch.bfloat16) * 0.05)(D, H * Dh)),
            "wk": _w((lambda *s: torch.randn(*s, dtype=torch.bfloat16) * 0.05)(D, Dh)),
            "wv": _w((lambda *s: torch.randn(*s, dtype=torch.bfloat16) * 0.05)(D, Dh)),
            "wo": _w((lambda *s: torch.randn(*s, dtype=torch.bfloat16) * 0.05)(H * Dh, D)),
        }
    _A_in = _A_setup()

    def _B_setup():
        B, S, D, F = 1, 2048, 640, 1536
        return {
            "x": _w((lambda *s: torch.randn(*s, dtype=torch.bfloat16) * 0.05)(B, S, D)),
            "w1": _w((lambda *s: torch.randn(*s, dtype=torch.bfloat16) * 0.8)(D, F) * (D ** -0.5)),
            "b1": _w((lambda *s: torch.randn(*s, dtype=torch.bfloat16) * 0.8)(F) * 0.01),
            "w2": _w((lambda *s: torch.randn(*s, dtype=torch.bfloat16) * 0.8)(F, D) * (F ** -0.5)),
            "b2": _w((lambda *s: torch.randn(*s, dtype=torch.bfloat16) * 0.8)(D) * 0.01),
        }
    _B_in = _B_setup()

    return {
        "A_x": _A_in["x"],
        "A_wq": _A_in["wq"],
        "A_wk": _A_in["wk"],
        "A_wv": _A_in["wv"],
        "A_wo": _A_in["wo"],
        "B_x": _B_in["x"],
        "B_w1": _B_in["w1"],
        "B_b1": _B_in["b1"],
        "B_w2": _B_in["w2"],
        "B_b2": _B_in["b2"],
    }

def reference(A_x, A_wq, A_wk, A_wv, A_wo, B_x, B_w1, B_b1, B_w2, B_b2):
    def _A_ref(x, wq, wk, wv, wo):
        B, S, D = x.shape
        H = 32
        Dh = D // H
        q = (lambda x, *d: x.permute(*d))((x @ wq).reshape(B, S, H, Dh), 0, 2, 1, 3)
        k = x @ wk
        v = x @ wv
        scores = torch.einsum("bhqd,bkd->bhqk", q, k) * (Dh ** -0.5)
        p = _softmax(scores, axis=-1)
        o = torch.einsum("bhqk,bkd->bhqd", p, v)
        return (lambda x, *d: x.permute(*d))(o, 0, 2, 1, 3).reshape(B, S, H * Dh) @ wo

    def _B_ref(x, w1, b1, w2, b2):
        h = torch.einsum("bsd,df->bsf", x, w1) + b1
        h = _gelu(h)
        return torch.einsum("bsf,fd->bsd", h, w2) + b2

    x = A_x
    x = x + _A_ref(_layernorm(x, axis=-1), A_wq, A_wk, A_wv, A_wo)
    x = x + _B_ref(_layernorm(x, axis=-1), B_w1, B_b1, B_w2, B_b2)
    x = x + _A_ref(_layernorm(x, axis=-1), A_wq, A_wk, A_wv, A_wo)
    x = x + _B_ref(_layernorm(x, axis=-1), B_w1, B_b1, B_w2, B_b2)
    return x
```

```python
import re

def _expand(tok):
    tok = tok.strip()
    neg = tok.lstrip('-')
    if neg.startswith('abs(') or neg.startswith('|'):
        neg = neg.replace('abs(', '').replace(')', '').replace('|', '')
    m = re.fullmatch(r'([vas])\[(\d+):(\d+)\]', neg)
    if m:
        return ['%s%d' % (m.group(1), i) for i in range(int(m.group(2)), int(m.group(3)) + 1)]
    m = re.fullmatch(r'([vas])(\d+)', neg)
    if m:
        return [neg]
    if neg == 'vcc': return ['vcc']
    if neg == 'exec': return ['exec']
    if neg == 'm0': return ['m0']
    return []

TRANS = ('v_exp_f32', 'v_log_f32', 'v_rcp_f32', 'v_rsq_f32', 'v_sqrt_f32', 'v_sin_f32', 'v_cos_f32')

class Ins:
    __slots__ = ('text', 'op', 'kind', 'wr', 'rd', 'rdA', 'rdC', 'passes', 'dpp', 'comment', 'nops')
    def __init__(self, text):
        self.text = text
        t = text.split(';')[0].strip()
        parts = t.split(None, 1)
        self.op = parts[0]
        rest = parts[1] if len(parts) > 1 else ''
        ops = [o.strip() for o in self._split(rest)]
        if ops:
            last = ops[-1].split()
            mods = last[1:]
            ops[-1] = last[0] if last else ''
        else:
            mods = []
        op = self.op
        self.wr = []; self.rd = []; self.rdA = []; self.rdC = []; self.passes = 0
        self.dpp = any(k in t for k in (' row_', 'quad_perm', ' wave_'))
        R = lambda i: _expand(ops[i]) if i < len(ops) else []
        allr = lambda a: [r for i in range(a, len(ops)) for r in R(i)]
        if op.startswith('v_mfma'):
            self.kind = 'mfma'
            self.passes = 4 if '16x16' in op else 8
            self.wr = R(0); self.rdA = R(1) + R(2); self.rdC = R(3); self.rd = self.rdA + self.rdC
        elif op.startswith('v_cmp'):
            self.kind = 'valu'; self.wr = R(0); self.rd = allr(1)
        elif op in ('v_readfirstlane_b32', 'v_readlane_b32'):
            self.kind = 'readlane'; self.wr = R(0); self.rd = allr(1)
        elif op.startswith('v_permlane'):
            self.kind = 'permlane'; self.wr = R(0) + R(1); self.rd = R(0) + R(1)
        elif op.startswith('v_'):
            base = op.replace('_e32', '').replace('_e64', '').replace('_dpp', '')
            self.kind = 'trans' if base in TRANS else 'valu'
            self.wr = R(0); self.rd = allr(1)
            if base in ('v_add_co_u32', 'v_sub_co_u32', 'v_addc_co_u32', 'v_subb_co_u32'):
                self.wr = R(0) + R(1); self.rd = allr(2)
            if base in ('v_fmac_f32', 'v_dot2c_f32_bf16', 'v_pk_fmac_f16') or self.dpp:
                self.rd = self.rd + R(0)
            if base == 'v_cndmask_b32' and len(ops) == 3:
                self.rd = self.rd + ['vcc']
        elif op.startswith('buffer_load') or op.startswith('global_load'):
            self.kind = 'vmem'
            if 'lds' in mods or op.startswith('global_load_lds'):
                self.rd = allr(0) + ['m0']; self.kind = 'dma'
            else:
                self.wr = R(0); self.rd = allr(1)
                if 'd16' in op: self.rd = self.rd + R(0)
        elif op.startswith('buffer_store') or op.startswith('global_store'):
            self.kind = 'store'; self.rd = allr(0)
            if 'x4' in op or 'x3' in op:
                i = 0 if op.startswith('buffer') else 1
                self.rdC = R(i)
        elif op.startswith('buffer_atomic') or op.startswith('global_atomic'):
            self.kind = 'store'; self.rd = allr(0)
            if 'sc0' in mods: self.wr = R(0)
        elif op.startswith('buffer_'):
            self.kind = 'other'
        elif op.startswith('ds_read') or op.startswith('ds_bpermute') or op.startswith('ds_swizzle'):
            self.kind = 'ds'; self.wr = R(0); self.rd = allr(1)
        elif op.startswith('ds_'):
            self.kind = 'ds'; self.rd = allr(0)
        elif op == 's_nop':
            self.kind = 'nop'; self.nops = int(ops[0], 0) + 1
        elif op.startswith('s_'):
            self.kind = 'salu'
            if op.startswith(('s_cmp', 's_cbranch', 's_branch', 's_waitcnt', 's_barrier', 's_endpgm', 's_sleep', 's_setprio', 's_bitcmp')):
                self.rd = allr(0)
            else:
                self.wr = R(0); self.rd = allr(1)
                if 'saveexec' in op: self.wr = self.wr + ['exec']
        else:
            raise ValueError('unknown instruction: ' + text)
    @staticmethod
    def _split(s):
        out = []; depth = 0; cur = ''
        for ch in s:
            if ch in '[(': depth += 1
            if ch in '])': depth -= 1
            if ch == ',' and depth == 0:
                out.append(cur); cur = ''
            else:
                cur += ch
        if cur.strip(): out.append(cur)
        return out
    def states(self):
        return self.nops if self.kind == 'nop' else 1

def isv(r): return r[0] in 'va' and r != 'vcc'
def iss(r): return (r[0] == 's' or r == 'vcc')

class HazardState:
    def __init__(self):
        self.pos = 0
        self.w = {}
        self.cread = {}
        self.stdata = {}
    def copy(self):
        h = HazardState(); h.pos = self.pos; h.w = dict(self.w); h.cread = dict(self.cread); h.stdata = dict(self.stdata); return h
    def need(self, I):
        req = 0
        def dist(p): return self.pos - p
        def want(p, d):
            nonlocal req
            req = max(req, d - dist(p))
        k = I.kind
        valu_like = k in ('valu', 'trans', 'readlane', 'permlane')
        for r in I.rd:
            e = self.w.get(r)
            if e is None: continue
            pk, pp, passes, dst = e
            if isv(r):
                if pk == 'mfma':
                    if k == 'mfma':
                        if r in I.rdA: want(pp, 8 if passes == 4 else 12)
                        if r in I.rdC:
                            if not (I.rdC == dst and I.passes == passes): want(pp, 6 if passes == 4 else 10)
                    else:
                        want(pp, 8 if passes == 4 else 12)
                elif pk in ('valu', 'trans', 'permlane'):
                    if k == 'mfma': want(pp, 2)
                    if k == 'permlane' or I.dpp: want(pp, 2)
                    if k == 'readlane': want(pp, 1)
                    if pk == 'trans' and k != 'trans' and (valu_like or k == 'mfma'): want(pp, 1)
            else:
                if pk in ('valu', 'readlane', 'trans'):
                    if valu_like or k == 'mfma': want(pp, 4 if k == 'readlane' else 2)
                    if k in ('vmem', 'dma', 'store'): want(pp, 5)
                if pk == 'salu' and r == 'm0' and k in ('dma',): want(pp, 1)
        for r in I.wr:
            if isv(r):
                e = self.w.get(r)
                if e is not None and e[0] == 'mfma' and k != 'mfma':
                    want(e[1], 8 if e[2] == 4 else 12)
                if e is not None and e[0] == 'mfma' and k == 'mfma' and not (I.wr == e[3] and I.passes == e[2]):
                    want(e[1], 6 if e[2] == 4 else 10)
                c = self.cread.get(r)
                if c is not None and valu_like: want(c[0], 3 if c[1] == 4 else 7)
                s = self.stdata.get(r)
                if s is not None: want(s, 2 if valu_like else 1)
        return max(req, 0)
    def step(self, I):
        n = I.states()
        p = self.pos + n
        for r in I.wr:
            self.w[r] = (I.kind, p, I.passes, I.wr if I.kind == 'mfma' else None)
        if I.kind == 'mfma':
            for r in I.rdC: self.cread[r] = (p, I.passes)
        if I.kind == 'store':
            for r in I.rdC: self.stdata[r] = p
        self.pos = p
    def pending(self):
        m = 0
        for r, (k, p, passes, dst) in self.w.items():
            d = 0
            if k == 'mfma': d = 8 if passes == 4 else 12
            elif k in ('valu', 'trans', 'permlane', 'readlane'): d = 5 if not isv(r) else 2
            elif k == 'salu' and r == 'm0': d = 1
            m = max(m, d - (self.pos - p))
        for r, (p, passes) in self.cread.items(): m = max(m, (3 if passes == 4 else 7) - (self.pos - p))
        for r, p in self.stdata.items(): m = max(m, 2 - (self.pos - p))
        return max(m, 0)
    def merge(self, other):
        h = HazardState(); h.pos = 1000
        for src in (self, other):
            for r, (k, p, passes, dst) in src.w.items():
                np_ = h.pos - (src.pos - p)
                e = h.w.get(r)
                cand = (k, np_, passes, dst)
                if e is None or self._rank(cand, h.pos) > self._rank(e, h.pos): h.w[r] = cand
            for r, (p, passes) in src.cread.items():
                np_ = h.pos - (src.pos - p)
                if r not in h.cread or np_ + passes > h.cread[r][0] + h.cread[r][1]: h.cread[r] = (np_, passes)
            for r, p in src.stdata.items():
                np_ = h.pos - (src.pos - p)
                if r not in h.stdata or np_ > h.stdata[r]: h.stdata[r] = np_
        return h
    @staticmethod
    def _rank(e, pos):
        k, p, passes, dst = e
        d = 12 if (k == 'mfma' and passes == 8) else 8 if k == 'mfma' else 5
        return d - (pos - p)

class Asm:
    def __init__(self):
        self.items = []
        self.vm = []
        self.lg = []
        self.uid = 0
    def I(self, text, tag=None):
        ins = Ins(text)
        self.items.append(ins)
        if ins.kind in ('vmem', 'dma', 'store'):
            self.vm.append(tag)
        elif ins.kind == 'ds':
            self.lg.append(tag)
        return ins
    def __call__(self, text, tag=None): return self.I(text, tag)
    def many(self, lst):
        for t in lst: self.I(t)
    def label(self, name): self.items.append(('label', name))
    def raw(self, text): self.items.append(('raw', text))
    def comment(self, text): self.items.append(('raw', '; ' + text))
    def newlabel(self, base):
        self.uid += 1
        return '%s_%d' % (base, self.uid)
    def loop_begin(self, name): self.items.append(('loop_begin', name))
    def loop_end(self, name): self.items.append(('loop_end', name))
    def wait_vm(self, tag, extra=''):
        idx = max(i for i, t in enumerate(self.vm) if t == tag or (isinstance(t, tuple) and tag in t))
        n = len(self.vm) - 1 - idx
        assert n <= 63, n
        self.I('s_waitcnt vmcnt(%d)%s' % (n, extra))
        self.vm = self.vm[idx + 1:]
    def wait_vm0(self):
        self.I('s_waitcnt vmcnt(0)'); self.vm = []
    def wait_lg(self, tag):
        idx = max(i for i, t in enumerate(self.lg) if t == tag)
        n = len(self.lg) - 1 - idx
        assert n <= 15, n
        self.I('s_waitcnt lgkmcnt(%d)' % n)
        self.lg = self.lg[idx + 1:]
    def wait_lg0(self):
        self.I('s_waitcnt lgkmcnt(0)'); self.lg = []
    def wait_all(self):
        self.I('s_waitcnt vmcnt(0) lgkmcnt(0)'); self.vm = []; self.lg = []
    def render(self):
        out = []
        st = HazardState()
        items = self.items
        i = 0
        def run(seq, st, out):
            for it in seq:
                if isinstance(it, Ins):
                    n = st.need(it)
                    while n > 0:
                        c = min(n, 16)
                        nop = Ins('s_nop %d' % (c - 1)); out.append(nop); st.step(nop); n -= c
                    out.append(it); st.step(it)
                    if it.op.startswith(('s_cbranch', 's_branch', 's_setpc')):
                        p = st.pending()
                        if p > 0 and not getattr(self, '_inloop', False):
                            pass
                else:
                    kind = it[0]
                    if kind == 'label':
                        p = st.pending()
                        while p > 0:
                            c = min(p, 16)
                            nop = Ins('s_nop %d' % (c - 1)); out.append(nop); st.step(nop); p -= c
                    out.append(it)
            return st
        def pad_branches(seq):
            return seq
        while i < len(items):
            it = items[i]
            if not isinstance(it, Ins) and it[0] == 'loop_begin':
                name = it[1]
                j = i + 1
                while not (not isinstance(items[j], Ins) and items[j][0] == 'loop_end' and items[j][1] == name): j += 1
                body = items[i + 1:j]
                entry = st.copy()
                for _ in range(4):
                    tmp = []
                    end = self._run_body(body, entry.copy(), tmp)
                    new_entry = st.merge(end)
                    entry = new_entry
                tmp = []
                end = self._run_body(body, entry.copy(), tmp)
                out.append(('label', name))
                out += tmp
                st = end
                i = j + 1
                continue
            if isinstance(it, Ins) and it.op.startswith(('s_cbranch', 's_branch')):
                p = st.pending()
                while p > 0:
                    c = min(p, 16)
                    nop = Ins('s_nop %d' % (c - 1)); out.append(nop); st.step(nop); p -= c
            st = run([it], st, out)
            i += 1
        lines = []
        for it in out:
            if isinstance(it, Ins): lines.append('  ' + it.text)
            elif it[0] == 'label': lines.append(it[1] + ':')
            elif it[0] == 'raw': lines.append(it[1])
        return '\n'.join(lines) + '\n'
    def _run_body(self, body, st, out):
        for it in body:
            if isinstance(it, Ins):
                n = st.need(it)
                while n > 0:
                    c = min(n, 16)
                    nop = Ins('s_nop %d' % (c - 1)); out.append(nop); st.step(nop); n -= c
                out.append(it); st.step(it)
            else:
                assert it[0] == 'raw', 'no labels inside hot loops: %r' % (it,)
                out.append(it)
        return st
```

```python
S, D, H, DH, F = 2048, 640, 32, 20, 1536
KB = 1024
off = 0
def alloc(n, align=4096):
    global off
    off = (off + align - 1) // align * align
    o = off; off += n
    return o
FLAGC  = alloc(32 * 128)
FLAGKV = alloc(256 * 4)
WO_T   = alloc(800 * KB)
W2_T   = alloc(1920 * KB)
W1_T   = alloc(1920 * KB)
WQ_T   = alloc(1280 * KB)
WKV_T  = alloc(80 * KB)
CS1    = alloc(4 * 96 * 64)
B1P    = alloc(96 * 64)
B2P    = alloc(40 * 64)
CSQ    = alloc(4 * 32 * 128)
CSKV   = alloc(4 * 2 * 128)
ACT = 128 * 20 * KB
O_   = [alloc(ACT), alloc(ACT)]
X1_  = [alloc(ACT), alloc(ACT)]
X2_  = [alloc(ACT)]
H_   = [alloc(128 * 48 * KB), alloc(128 * 48 * KB)]
STB = 128 * 8 * 512
ST0  = alloc(STB)
ST1_ = [alloc(STB), alloc(STB)]
ST2_ = [alloc(STB)]
KVREC = 3072
KV_  = [alloc(64 * KVREC), alloc(64 * KVREC)]
KN_  = [alloc(128 * 4), alloc(128 * 4)]
DBGW = alloc(16 * 256 * 1024)
WS_USED = off
KV_K1, KV_V0, KV_V1, KV_K2 = 0, 1024, 1696, 2368
def col_perm(T, i):
    return 32 * (T >> 1) + 8 * (i >> 2) + 4 * (T & 1) + (i & 3)
if __name__ == '__main__':
    for k, v in list(globals().items()):
        if k.isupper() or k.endswith('_'): print(k, v if not isinstance(v, int) else hex(v))
```

```python
import layout as L
import math

S_WS, S_X, S_OUT, S_DBG, S_TMP = 's[8:11]', 's[12:15]', 's[16:19]', 's[20:23]', 's[24:27]'
sW, sC, sJ, sROLE, sP = 's28', 's29', 's30', 's31', 's32'
vTID, vLANE, vL16, vROW, vG = 'v0', 'v1', 'v2', 'v3', 'v4'
RES = 246
LDS_STATS = 81920
LDS_RED = 82432
QSCALE = (20.0 ** -0.5) * math.log2(math.e)
FAST_T2 = 64.0 * 64.0
G1 = -2.0 * math.sqrt(2.0 / math.pi) * math.log2(math.e)
G2 = G1 * 0.044715

import struct
def f2b(x): return '0x%08x' % struct.unpack('<I', struct.pack('<f', x))[0]

def helpers():
    import gen1 as G
    return G

def vr(a, n=1): return 'v%d' % a if n == 1 else 'v[%d:%d]' % (a, a + n - 1)
def ar(a, n=1): return 'a%d' % a if n == 1 else 'a[%d:%d]' % (a, a + n - 1)

def sel_layer(a, dst, v0, v1):
    a('s_cmp_eq_u32 %s, 0' % sP)
    a('s_cselect_b32 %s, %d, %d' % (dst, v0, v1) if (v0 <= 64 or v1 <= 64) else 's_mov_b32 %s, %d' % (dst, v0))
    if not (v0 <= 64 or v1 <= 64):
        a('s_cselect_b32 %s, %s, %d' % (dst, dst, v1))

def flagval(k):
    def f(a):
        a('s_lshl_b32 s43, %s, 3' % sP); a('s_add_u32 s43, s43, %d' % k)
    return f

def xsum_g(a, r, tmp):
    a('v_mov_b32 v%d, v%d' % (tmp, r))
    a('v_permlane16_swap_b32 v%d, v%d' % (r, tmp))
    a('v_add_f32 v%d, v%d, v%d' % (r, r, tmp))
    a('v_mov_b32 v%d, v%d' % (tmp, r))
    a('v_permlane32_swap_b32 v%d, v%d' % (r, tmp))
    a('v_add_f32 v%d, v%d, v%d' % (r, r, tmp))

def max_row16(a, r):
    for sh in (8, 4, 2, 1):
        a('v_max_f32_dpp v%d, v%d, v%d row_ror:%d row_mask:0xf bank_mask:0xf' % (r, r, r, sh))

def max_wave(a, r, tmp):
    max_row16(a, r)
    a('v_mov_b32 v%d, v%d' % (tmp, r))
    a('v_permlane16_swap_b32 v%d, v%d' % (r, tmp))
    a('v_max_f32 v%d, v%d, v%d' % (r, r, tmp))
    a('v_mov_b32 v%d, v%d' % (tmp, r))
    a('v_permlane32_swap_b32 v%d, v%d' % (r, tmp))
    a('v_max_f32 v%d, v%d, v%d' % (r, r, tmp))

def row_stats_issue(a, sbase, R):
    a('s_lshl_b32 s40, %s, 2' % sC); a('s_add_u32 s40, s40, %s' % sW); a('s_lshl_b32 s40, s40, 12'); a('s_add_u32 s40, s40, %s' % sbase)
    a('v_lshlrev_b32 v%d, 3, %s' % (R + 16, vLANE))
    for m in range(8):
        a('buffer_load_dwordx2 v[%d:%d], v%d, %s, s40 offen offset:%d sc1' % (R + 2 * m, R + 2 * m + 1, R + 16, S_WS, 512 * m), tag='stats')

def row_stats_finish(a, R):
    a.wait_vm('stats')
    for m in range(1, 8):
        a('v_pk_add_f32 v[%d:%d], v[%d:%d], v[%d:%d]' % (R, R + 1, R, R + 1, R + 2 * m, R + 2 * m + 1))
    xsum_g(a, R, R + 2); xsum_g(a, R + 1, R + 3)
    a('v_mul_f32 v%d, %s, v%d' % (R, f2b(1.0 / 640), R))
    a('v_mul_f32 v%d, %s, v%d' % (R + 1, f2b(1.0 / 640), R + 1))
    a('v_fma_f32 v%d, -v%d, v%d, v%d' % (R + 1, R, R, R + 1))
    a('v_max_f32 v%d, 0, v%d' % (R + 1, R + 1))
    a('v_add_f32 v%d, %s, v%d' % (R + 1, f2b(1e-5), R + 1))
    a('v_rsq_f32 v%d, v%d' % (R + 2, R + 1))
    a('v_mul_f32 v%d, v%d, v%d' % (R + 3, R, R + 2))
    a('v_sub_f32 v%d, 0, v%d' % (R + 3, R + 3))
    import os
    if os.environ.get('DBG') == 'stats':
        G = helpers()
        for i, r in enumerate((R, R + 1, R + 2, R + 3)): G.dump(a, r, i)
    a('s_lshl_b32 s40, %s, 7' % sW); a('s_add_u32 s40, s40, %d' % LDS_STATS)
    a('v_lshlrev_b32 v%d, 3, %s' % (R + 4, vROW)); a('v_add_u32 v%d, s40, v%d' % (R + 4, R + 4))
    a('s_mov_b64 exec, 0xffff')
    a('ds_write_b64 v%d, v[%d:%d]' % (R + 4, R + 2, R + 3))
    a('s_mov_b64 exec, -1')

def dma(a, voff, srd, soff, m0, tag='dma', sc='sc1'):
    a('s_mov_b32 m0, %s' % m0)
    a('buffer_load_dwordx4 %s, %s, %s offen %s lds' % (voff, srd, soff, sc), tag=tag)

def load_x_tile(a, voff, step_reg, base_reg):
    a('s_mul_i32 s44, %s, %d' % (sW, 20 * 1024))
    a('s_mov_b32 s45, %s' % base_reg)
    for s in range(20):
        a('s_add_u32 m0, s44, %d' % (s * 1024))
        a('buffer_load_dwordx4 %s, %s, s45 offen sc1 lds' % (voff, S_TMP), tag='x')
        if s < 19: a('s_add_u32 s45, s45, %s' % step_reg)

def qkv(a):
    G = helpers()
    l0, l1 = a.newlabel('QKV_p0'), a.newlabel('QKV_src')
    a('s_cmp_eq_u32 %s, 0' % sP); a('s_cbranch_scc1 %s' % l0)
    G.wait_cluster(a, lambda: (a('s_mov_b32 s43, 4')))
    for i in range(4): a('s_mov_b32 s%d, s%d' % (24 + i, 8 + i))
    a('v_mov_b32 v8, %s' % vL16); a('s_mov_b32 s46, 1024'); a('s_mov_b32 s47, %d' % L.X2_[0]); a('s_mov_b32 s48, %d' % L.ST2_[0])
    a('s_branch %s' % l1)
    a.label(l0)
    for i in range(4): a('s_mov_b32 s%d, s%d' % (24 + i, 12 + i))
    a('v_mul_u32_u24 v8, 1280, %s' % vROW); a('v_lshlrev_b32 v9, 4, %s' % vG); a('v_add_u32 v8, v8, v9')
    a('s_mov_b32 s46, 64'); a('s_mov_b32 s47, 0'); a('s_mov_b32 s48, %d' % L.ST0)
    a.label(l1)
    a('s_lshl_b32 s40, %s, 2' % sC); a('s_add_u32 s40, s40, %s' % sW); a('s_mul_i32 s40, s40, 20480'); a('s_add_u32 s47, s47, s40')
    load_x_tile(a, 'v8', 's46', 's47')
    row_stats_issue(a, 's48', 16)
    a('s_lshr_b32 s49, %s, 2' % sJ)
    a('s_and_b32 s50, %s, 3' % sJ)
    a('s_lshl_b32 s40, s49, 2'); a('s_add_u32 s40, s40, %s' % sW); a('s_mul_i32 s40, s40, 10240'); a('s_add_u32 s40, s40, %d' % L.WKV_T)
    for f in range(10):
        a('s_add_u32 s41, s40, %d' % (f * 1024))
        a('buffer_load_dwordx4 v[%d:%d], %s, %s, s41 offen sc1' % (64 + 4 * f, 67 + 4 * f, vL16, S_WS), tag='wkv')
    row_stats_finish(a, 16)
    a('s_lshl_b32 s51, %s, 2' % sJ); a('s_add_u32 s51, s51, %s' % sW)
    a('s_mul_i32 s40, s51, 40960'); a('s_add_u32 s40, s40, %d' % L.WQ_T)
    for f in range(40):
        a('s_add_u32 s41, s40, %d' % (f * 1024))
        a('buffer_load_dwordx4 a[%d:%d], %s, %s, s41 offen sc1' % (4 * f, 4 * f + 3, vL16, S_WS), tag='wq')
    a.wait_vm('wkv')
    a.wait_lg0()
    a('s_barrier')
    a('s_mul_i32 s40, s50, 20'); a('s_mul_i32 s41, %s, 5' % sW); a('s_add_u32 s40, s40, s41'); a('s_lshl_b32 s40, s40, 10')
    a('v_add_u32 v9, s40, %s' % vL16)
    for s in range(5):
        a('ds_read_b128 v[%d:%d], v9 offset:%d' % (104 + 4 * s, 107 + 4 * s, 1024 * s))
    for r in range(8): a('v_mov_b32 v%d, 0' % (124 + r))
    a.wait_lg0()
    import os
    if os.environ.get('DBG') == 'kv':
        G.dump(a, 104, 0); G.dump(a, 64, 1)
    lv, lr = a.newlabel('KV_isV'), a.newlabel('KV_red')
    a('s_cmp_eq_u32 s49, 0'); a('s_cbranch_scc0 %s' % lv)
    for s in range(5):
        for T in range(2):
            a('v_mfma_f32_16x16x32_bf16 v[%d:%d], v[%d:%d], v[%d:%d], v[%d:%d]' % (124 + 4 * T, 127 + 4 * T, 64 + 8 * s + 4 * T, 67 + 8 * s + 4 * T, 104 + 4 * s, 107 + 4 * s, 124 + 4 * T, 127 + 4 * T))
    a('s_branch %s' % lr)
    a.label(lv)
    for s in range(5):
        for T in range(2):
            a('v_mfma_f32_16x16x32_bf16 v[%d:%d], v[%d:%d], v[%d:%d], v[%d:%d]' % (124 + 4 * T, 127 + 4 * T, 104 + 4 * s, 107 + 4 * s, 64 + 8 * s + 4 * T, 67 + 8 * s + 4 * T, 124 + 4 * T, 127 + 4 * T))
    a.label(lr)
    if os.environ.get('DBG') == 'kv':
        G.dump(a, 124, 2)
    a('s_lshl_b32 s40, %s, 11' % sW); a('s_add_u32 s40, s40, %d' % LDS_RED)
    a('v_add_u32 v9, s40, %s' % vL16)
    a('ds_write_b128 v9, v[124:127]'); a('ds_write_b128 v9, v[128:131] offset:1024')
    a.wait_lg0()
    a('s_barrier')
    lq = a.newlabel('KV_skip')
    a('s_cmp_eq_u32 %s, 0' % sW); a('s_cbranch_scc0 %s' % lq)
    kv_epilogue(a)
    a.label(lq)
    a.vm = ['wq'] * 40
    q_proj(a)

def kv_epilogue(a):
    a('v_add_u32 v9, %d, %s' % (LDS_RED, vL16))
    for w in range(4):
        for T in range(2):
            a('ds_read_b128 v[%d:%d], v9 offset:%d' % (64 + 8 * w + 4 * T, 67 + 8 * w + 4 * T, 2048 * w + 1024 * T))
    sel_layer(a, 's44', L.KV_[0], L.KV_[1])
    a('s_lshl_b32 s40, %s, 1' % sC); a('s_lshr_b32 s41, s50, 1'); a('s_add_u32 s40, s40, s41'); a('s_mul_i32 s40, s40, %d' % L.KVREC); a('s_add_u32 s44, s44, s40')
    a.wait_lg0()
    for w in range(1, 4):
        for h in range(4):
            a('v_pk_add_f32 v[%d:%d], v[%d:%d], v[%d:%d]' % (64 + 2 * h, 65 + 2 * h, 64 + 2 * h, 65 + 2 * h, 64 + 8 * w + 2 * h, 65 + 8 * w + 2 * h))
    lv, le = a.newlabel('KVE_V'), a.newlabel('KVE_end')
    a('s_cmp_eq_u32 s49, 0'); a('s_cbranch_scc0 %s' % lv)
    a('v_lshlrev_b32 v9, 4, %s' % vG)
    for kq in range(4):
        for T in range(2):
            a('s_mov_b32 s41, %d' % (L.CSKV + (kq * 2 + 0) * 128 + T * 64))
            a('buffer_load_dwordx4 v[%d:%d], v9, %s, s41 offen sc1' % (80 + 8 * kq + 4 * T, 83 + 8 * kq + 4 * T, S_WS), tag='cs')
    a('s_lshl_b32 s40, s50, 7'); a('s_add_u32 s40, s40, %d' % LDS_STATS)
    a('v_lshlrev_b32 v10, 3, %s' % vROW); a('v_add_u32 v10, s40, v10')
    a('ds_read_b64 v[76:77], v10')
    a.wait_vm('cs'); a.wait_lg0()
    import os
    if os.environ.get('DBG') == 'kv':
        G = helpers(); G.dump(a, 76, 3); G.dump(a, 64, 4); G.dump(a, 80, 5)
    for kq in range(1, 4):
        for h in range(4):
            a('v_pk_add_f32 v[%d:%d], v[%d:%d], v[%d:%d]' % (80 + 2 * h, 81 + 2 * h, 80 + 2 * h, 81 + 2 * h, 80 + 8 * kq + 2 * h, 81 + 8 * kq + 2 * h))
    for r in range(8):
        a('v_mul_f32 v%d, v77, v%d' % (80 + r, 80 + r))
        a('v_fma_f32 v%d, v%d, v76, v%d' % (64 + r, 64 + r, 80 + r))
    a('v_mul_f32 v72, v64, v64')
    for r in range(1, 8): a('v_fma_f32 v72, v%d, v%d, v72' % (64 + r, 64 + r))
    for t in range(4): a('v_cvt_pk_bf16_f32 v%d, v%d, v%d' % (112 + t, 64 + 2 * t, 65 + 2 * t))
    a('s_and_b32 s40, s50, 1'); a('s_lshl_b32 s40, s40, 4')
    a('v_add_u32 v10, s40, %s' % vROW)
    a('v_and_b32 v11, 1, %s' % vG); a('v_lshlrev_b32 v11, 5, v11'); a('v_add_u32 v11, v11, v10'); a('v_lshlrev_b32 v11, 4, v11')
    a('v_lshrrev_b32 v12, 1, %s' % vG); a('v_lshlrev_b32 v12, 3, v12'); a('v_add_u32 v11, v11, v12')
    a('buffer_store_dwordx2 v[112:113], v11, %s, s44 offen sc1' % S_WS)
    a('v_cmp_eq_u32 vcc, 0, %s' % vG)
    a('v_mov_b32 v12, 0x3f803f80'); a('v_mov_b32 v13, 0x00003f80')
    a('v_cndmask_b32 v114, v12, v114, vcc'); a('v_cndmask_b32 v115, v13, v115, vcc')
    a('v_lshlrev_b32 v11, 5, %s' % vG); a('v_add_u32 v11, v11, v10'); a('v_lshlrev_b32 v11, 3, v11')
    a('s_mov_b32 exec_lo, -1'); a('s_mov_b32 exec_hi, 0')
    a('buffer_store_dwordx2 v[114:115], v11, %s, s44 offen offset:%d sc1' % (S_WS, L.KV_K2))
    a('s_mov_b64 exec, -1')
    xsum_g(a, 72, 73)
    max_row16(a, 72)
    sel_layer(a, 's45', L.KN_[0], L.KN_[1])
    a('s_lshl_b32 s40, %s, 2' % sC); a('s_add_u32 s40, s40, s50'); a('s_lshl_b32 s40, s40, 2'); a('s_add_u32 s45, s45, s40')
    a('v_mov_b32 v11, 0')
    a('s_mov_b64 exec, 1')
    a('buffer_store_dword v72, v11, %s, s45 offen sc1' % S_WS)
    a('s_mov_b64 exec, -1')
    a('s_branch %s' % le)
    a.label(lv)
    a('v_lshlrev_b32 v9, 2, %s' % vROW)
    for kq in range(4):
        for T in range(2):
            a('s_mov_b32 s41, %d' % (L.CSKV + (kq * 2 + 1) * 128 + T * 64))
            a('buffer_load_dword v%d, v9, %s, s41 offen sc1' % (80 + 2 * kq + T, S_WS), tag='cs')
    a('s_lshl_b32 s40, s50, 7'); a('s_add_u32 s40, s40, %d' % LDS_STATS)
    a('v_lshlrev_b32 v10, 5, %s' % vG); a('v_add_u32 v10, s40, v10')
    a('ds_read_b128 v[96:99], v10'); a('ds_read_b128 v[100:103], v10 offset:16')
    a.wait_vm('cs'); a.wait_lg0()
    for kq in range(1, 4):
        a('v_pk_add_f32 v[80:81], v[80:81], v[%d:%d]' % (80 + 2 * kq, 81 + 2 * kq))
    for T in range(2):
        for r in range(4):
            a('v_mul_f32 v90, v%d, v%d' % (97 + 2 * r, 80 + T))
            a('v_fma_f32 v%d, v%d, v%d, v90' % (64 + 4 * T + r, 64 + 4 * T + r, 96 + 2 * r))
    for t in range(4): a('v_cvt_pk_bf16_f32 v%d, v%d, v%d' % (112 + t, 64 + 2 * t, 65 + 2 * t))
    a('v_cmp_eq_u32 vcc, 4, %s' % vROW)
    a('v_mov_b32 v12, 0x3f803f80')
    a('v_cndmask_b32 v114, v114, v12, vcc'); a('v_cndmask_b32 v115, v115, v12, vcc')
    a('s_and_b32 s40, s50, 1'); a('s_mul_i32 s40, s40, %d' % (L.KV_V1 - L.KV_V0)); a('s_add_u32 s40, s40, %d' % L.KV_V0); a('s_add_u32 s44, s44, s40')
    a('v_and_b32 v11, 1, %s' % vG); a('v_mul_u32_u24 v11, 21, v11'); a('v_add_u32 v11, v11, %s' % vROW); a('v_lshlrev_b32 v11, 4, v11')
    a('v_lshrrev_b32 v12, 1, %s' % vG); a('v_lshlrev_b32 v12, 3, v12'); a('v_add_u32 v11, v11, v12')
    a('buffer_store_dwordx2 v[112:113], v11, %s, s44 offen sc1' % S_WS)
    a('v_cmp_ge_u32 vcc, 4, %s' % vROW)
    a('s_and_saveexec_b64 s[46:47], vcc')
    a('buffer_store_dwordx2 v[114:115], v11, %s, s44 offen offset:256 sc1' % S_WS)
    a('s_mov_b64 exec, s[46:47]')
    a.label(le)
    a('s_waitcnt vmcnt(0)')
    a('s_lshl_b32 s40, %s, 2' % sROLE); a('s_add_u32 s40, s40, %d' % L.FLAGKV)
    a('s_add_u32 s43, %s, 1' % sP)
    a('v_mov_b32 v11, 0'); a('v_mov_b32 v12, s43')
    a('s_mov_b64 exec, 1')
    a('buffer_store_dword v12, v11, %s, s40 offen sc1' % S_WS)
    a('s_mov_b64 exec, -1')

SA, SB = (64, 96), (80, 112)
PA, PB = 128, 136
OA, OB = 144, 160
QA1, QA2, QB1, QB2 = 176, 180, 184, 188
KVB = (192, 208)
vK1, vK2, vV = 'v224', 'v225', 'v226'

def q_proj(a):
    a.comment('---- Q projection: wave = head, two 32-row tiles')
    a('v_lshrrev_b32 v9, 4, %s' % vLANE); a('v_and_b32 v9, 1, v9'); a('v_mul_u32_u24 v9, %d, v9' % (20 * 1024))
    a('v_lshrrev_b32 v10, 5, %s' % vLANE); a('v_lshlrev_b32 v10, 4, v10'); a('v_add_u32 v10, v10, %s' % vROW); a('v_lshlrev_b32 v10, 4, v10')
    a('v_add_u32 v9, v9, v10')
    a('v_add_u32 v10, %d, v9' % (40 * 1024))
    a('v_lshrrev_b32 v11, 5, %s' % vLANE); a('v_lshlrev_b32 v11, 4, v11')
    for kq in range(4):
        a('s_lshl_b32 s40, s51, 7'); a('s_add_u32 s40, s40, %d' % (L.CSQ + kq * 32 * 128))
        for q in range(3):
            a('buffer_load_dwordx4 v[%d:%d], v11, %s, s40 offen offset:%d sc1' % (16 + 12 * kq + 4 * q, 19 + 12 * kq + 4 * q, S_WS, 32 * q), tag='csq')
    AQ, BQ = 64, 80
    for r in range(16): a('v_mov_b32 v%d, 0' % (AQ + r)); a('v_mov_b32 v%d, 0' % (BQ + r))
    a.wait_vm('wq')
    def rd(s16):
        off = (s16 >> 1) * 1024 + (s16 & 1) * 512
        b = 96 + 8 * (s16 & 1)
        a('ds_read_b128 v[%d:%d], v9 offset:%d' % (b, b + 3, off), tag=s16)
        a('ds_read_b128 v[%d:%d], v10 offset:%d' % (b + 4, b + 7, off), tag=s16)
    rd(0)
    for s16 in range(40):
        if s16 + 1 < 40: rd(s16 + 1)
        a.wait_lg(s16)
        b = 96 + 8 * (s16 & 1)
        a('v_mfma_f32_32x32x16_bf16 v[%d:%d], a[%d:%d], v[%d:%d], v[%d:%d]' % (AQ, AQ + 15, 4 * s16, 4 * s16 + 3, b, b + 3, AQ, AQ + 15))
        a('v_mfma_f32_32x32x16_bf16 v[%d:%d], a[%d:%d], v[%d:%d], v[%d:%d]' % (BQ, BQ + 15, 4 * s16, 4 * s16 + 3, b + 4, b + 7, BQ, BQ + 15))
    a('v_and_b32 v11, 31, %s' % vLANE); a('v_lshlrev_b32 v11, 3, v11'); a('v_add_u32 v11, %d, v11' % LDS_STATS)
    a('ds_read_b64 v[112:113], v11'); a('ds_read_b64 v[114:115], v11 offset:256')
    a.wait_vm('csq')
    for kq in range(1, 4):
        for h in range(6):
            a('v_pk_add_f32 v[%d:%d], v[%d:%d], v[%d:%d]' % (16 + 2 * h, 17 + 2 * h, 16 + 2 * h, 17 + 2 * h, 16 + 12 * kq + 2 * h, 17 + 12 * kq + 2 * h))
    a.wait_lg0()
    for r in range(4): a('v_mul_f32 v%d, %s, v%d' % (112 + r, f2b(QSCALE), 112 + r))
    for (ACC, st, q1, q2, nrm) in ((AQ, 112, QA1, QA2, 116), (BQ, 114, QB1, QB2, 117)):
        for r in range(12):
            a('v_mul_f32 v118, v%d, v%d' % (st + 1, 16 + r))
            a('v_fma_f32 v%d, v%d, v%d, v118' % (ACC + r, ACC + r, st))
        a('v_mul_f32 v%d, v%d, v%d' % (nrm, ACC, ACC))
        for r in range(1, 12): a('v_fma_f32 v%d, v%d, v%d, v%d' % (nrm, ACC + r, ACC + r, nrm))
        for t in range(4): a('v_cvt_pk_bf16_f32 v%d, v%d, v%d' % (q1 + t, ACC + 2 * t, ACC + 2 * t + 1))
        for t in range(2): a('v_cvt_pk_bf16_f32 v%d, v%d, v%d' % (q2 + t, ACC + 8 + 2 * t, ACC + 9 + 2 * t))
    for nrm in (116, 117):
        a('v_mov_b32 v118, v%d' % nrm)
        a('v_permlane32_swap_b32 v%d, v118' % nrm)
        a('v_add_f32 v%d, v%d, v118' % (nrm, nrm))
    a('v_max_f32 v116, v116, v117')
    max_wave(a, 116, 118)
    a('v_readfirstlane_b32 s52, v116')

def att_gap(S, P, q):
    return ['v_exp_f32 v%d, v%d' % (S + 4 * q + i, S + 4 * q + i) for i in range(4)] + \
           ['v_cvt_pk_bf16_f32 v%d, v%d, v%d' % (P + 2 * q + i, S + 4 * q + 2 * i, S + 4 * q + 2 * i + 1) for i in range(2)]
def mf16(d, A, B, c): return 'v_mfma_f32_32x32x16_bf16 v[%d:%d], v[%d:%d], v[%d:%d], %s' % (d, d + 15, A, A + 3, B, B + 3, c if isinstance(c, str) else 'v[%d:%d]' % (c, c + 15))
def mf8(d, A, B, c): return 'v_mfma_f32_32x32x8bf16_1k v[%d:%d], v[%d:%d], v[%d:%d], v[%d:%d]' % (d, d + 15, A, A + 1, B, B + 1, c, c + 15)
CH = 4 * L.KVREC

def kv_lds_off(t):
    return (t % 16) * L.KVREC

def attention(a):
    G = helpers()
    lab = a.newlabel('KVW')
    a('s_cmp_eq_u32 %s, 0' % sW); a('s_cbranch_scc0 %s' % lab)
    a('s_add_u32 s43, %s, 1' % sP); a('s_mov_b32 s40, %d' % L.FLAGKV)
    def nr():
        a('v_min_u32 v8, v8, v9'); a('v_min_u32 v10, v10, v11'); a('v_min_u32 v8, v8, v10'); a('v_cmp_gt_u32 vcc, s43, v8')
    G.spin(a, 'KVP', lambda: a('buffer_load_dwordx4 v[8:11], %s, %s, s40 offen sc1' % (vL16, S_WS)), nr)
    a.label(lab)
    a('s_waitcnt vmcnt(0) lgkmcnt(0)')
    a('s_barrier')
    a.vm = []; a.lg = []
    sel_layer(a, 's53', L.KV_[0], L.KV_[1])
    a('s_mul_i32 s54, %s, 3072' % sW)
    a('s_add_u32 s55, s53, s54')
    def issue_chunk(slot):
        for i in range(3):
            a('s_add_u32 m0, s54, %d' % (slot * CH + i * 1024))
            a('s_add_u32 s40, s55, %d' % (i * 1024))
            a('buffer_load_dwordx4 %s, %s, s40 offen sc1 lds' % (vL16, S_WS), tag='kv')
        a('s_add_u32 s55, s55, %d' % CH)
    for c in range(3): issue_chunk(c)
    sel_layer(a, 's45', L.KN_[0], L.KN_[1])
    a('v_lshlrev_b32 v8, 3, %s' % vLANE)
    a('buffer_load_dwordx2 v[10:11], v8, %s, s45 offen sc1' % S_WS, tag='kn')
    a('v_mov_b32 %s, %s' % (vK1, vL16))
    a('v_lshlrev_b32 %s, 3, %s' % (vK2, vLANE)); a('v_add_u32 %s, %d, %s' % (vK2, L.KV_K2, vK2))
    a('v_lshrrev_b32 v8, 5, %s' % vLANE); a('v_mul_u32_u24 v8, 21, v8'); a('v_and_b32 v9, 31, %s' % vLANE); a('v_add_u32 v8, v8, v9')
    a('v_lshlrev_b32 v8, 4, v8'); a('v_add_u32 %s, %d, v8' % (vV, L.KV_V0))
    a.wait_vm('kn')
    a('v_max_f32 v10, v10, v11')
    max_wave(a, 10, 11)
    a('v_mul_f32 v10, s52, v10')
    a('v_cmp_nge_f32 vcc, %s, v10' % f2b(FAST_T2))
    lfast = a.newlabel('ATT_fast')
    a('s_cmp_eq_u64 vcc, 0'); a('s_cbranch_scc1 %s' % lfast)
    true_max_prepass(a)
    a.label(lfast)
    for r in range(16): a('v_mov_b32 v%d, 0' % (OA + r)); a('v_mov_b32 v%d, 0' % (OB + r))
    for r in range(8): a('v_mov_b32 v%d, 0' % (PB + r))
    for r in range(4): a('v_mov_b32 v%d, 0' % (KVB[1] + 12 + r))
    a('s_waitcnt vmcnt(6)')
    a('s_barrier')
    def ldK(t, buf):
        o = kv_lds_off(t)
        a('ds_read_b128 v[%d:%d], %s offset:%d' % (KVB[buf], KVB[buf] + 3, vK1, o))
        a('ds_read_b64 v[%d:%d], %s offset:%d' % (KVB[buf] + 4, KVB[buf] + 5, vK2, o))
    ldK(0, 0); ldK(1, 1)
    a('ds_read_b128 v[%d:%d], %s offset:%d' % (KVB[0] + 8, KVB[0] + 11, vV, 0))
    a('ds_read_b128 v[%d:%d], %s offset:%d' % (KVB[0] + 12, KVB[0] + 15, vV, L.KV_V1 - L.KV_V0))
    a.wait_lg0()
    a(mf16(SA[0], KVB[0], QA1, '0')); a(mf16(SB[0], KVB[0], QB1, '0'))
    a(mf8(SA[0], KVB[0] + 4, QA2, SA[0])); a(mf8(SB[0], KVB[0] + 4, QB2, SB[0]))
    a('s_mov_b32 s56, 4')
    a('s_nop 7'); a('s_nop 7')
    a.loop_begin('L_ATT')
    for t in range(16):
        par = t & 1
        cur, nxt = KVB[par], KVB[1 - par]
        sa, sb, san, sbn = SA[par], SB[par], SA[1 - par], SB[1 - par]
        m = [mf16(san, nxt, QA1, '0'), mf8(san, nxt + 4, QA2, san), mf16(OB, nxt + 12, PB + 4, OB), mf16(OA, cur + 8, PA, OA),
             mf16(sbn, nxt, QB1, '0'), mf8(sbn, nxt + 4, QB2, sbn), mf16(OA, cur + 12, PA + 4, OA), mf16(OB, cur + 8, PB, OB)]
        g = [att_gap(sa, PA, q) for q in range(4)] + [att_gap(sb, PB, q) for q in range(4)]
        oK = kv_lds_off(t + 2); oV = kv_lds_off(t + 1)
        ldk1 = 'ds_read_b128 v[%d:%d], %s offset:%d' % (cur, cur + 3, vK1, oK)
        ldk2 = 'ds_read_b64 v[%d:%d], %s offset:%d' % (cur + 4, cur + 5, vK2, oK)
        ldv0 = 'ds_read_b128 v[%d:%d], %s offset:%d' % (nxt + 8, nxt + 11, vV, oV)
        ldv1 = 'ds_read_b128 v[%d:%d], %s offset:%d' % (nxt + 12, nxt + 15, vV, oV + L.KV_V1 - L.KV_V0)
        post = [[ldk1], [ldk2], [], [ldv0, ldv1][0:1], [ldv1], [], [], ['s_waitcnt lgkmcnt(0)']]
        pre = [[] for _ in range(8)]
        if t % 4 == 2:
            slot = ((t // 4) + 3) % 4
            pre[0] = ['s_waitcnt vmcnt(3)', 's_barrier']
            dm = []
            for i in range(3):
                dm.append(['s_add_u32 m0, s54, %d' % (slot * CH + i * 1024), 's_add_u32 s40, s55, %d' % (i * 1024),
                           'buffer_load_dwordx4 %s, %s, s40 offen sc1 lds' % (vL16, S_WS)])
            post[2] = dm[0]; post[5] = dm[1]; post[6] = dm[2] + ['s_add_u32 s55, s55, %d' % CH]
        for k in range(8):
            for x in pre[k]: a.I(x)
            a.I(m[k])
            for x in post[k]: a.I(x)
            for x in g[k]: a.I(x)
    a('s_sub_u32 s56, s56, 1'); a('s_cmp_lg_u32 s56, 0'); a('s_cbranch_scc1 L_ATT')
    a.loop_end('L_ATT')
    a.vm = []; a.lg = []
    a(mf16(OB, KVB[1] + 12, PB + 4, OB))
    att_epilogue(a)

def true_max_prepass(a):
    a.comment('---- fallback: exact row maxima')
    a('v_lshlrev_b32 v8, 3, %s' % vLANE)
    a('v_mov_b32 v12, 0xff800000'); a('v_mov_b32 v13, 0xff800000')
    a('s_mov_b32 s40, s53'); a('s_mov_b32 s41, 64')
    lp = a.newlabel('MAXP')
    a.label(lp)
    a('buffer_load_dwordx4 v[16:19], %s, %s, s40 offen sc1' % (vL16, S_WS))
    a('buffer_load_dwordx2 v[20:21], v8, %s, s40 offen offset:%d sc1' % (S_WS, L.KV_K2))
    a('s_waitcnt vmcnt(0)')
    a(mf16(64, 16, QA1, '0')); a(mf16(80, 16, QB1, '0'))
    a(mf8(64, 20, QA2, 64)); a(mf8(80, 20, QB2, 80))
    for r in range(16):
        a('v_max_f32 v12, v12, v%d' % (64 + r))
    for r in range(16):
        a('v_max_f32 v13, v13, v%d' % (80 + r))
    a('s_add_u32 s40, s40, %d' % L.KVREC); a('s_sub_u32 s41, s41, 1'); a('s_cmp_lg_u32 s41, 0'); a('s_cbranch_scc1 %s' % lp)
    for (m, q2) in ((12, QA2), (13, QB2)):
        a('v_mov_b32 v14, v%d' % m)
        a('v_permlane32_swap_b32 v%d, v14' % m)
        a('v_max_f32 v%d, v%d, v14' % (m, m))
        a('v_sub_f32 v14, 0, v%d' % m)
        a('v_and_b32 v15, 0xffff0000, v14'); a('v_sub_f32 v14, v14, v15')
        a('v_and_b32 v16, 0xffff0000, v14'); a('v_sub_f32 v14, v14, v16')
        a('v_lshrrev_b32 v15, 16, v15'); a('v_or_b32 v15, v15, v16')
        a('v_lshrrev_b32 v14, 16, v14')
        a('s_mov_b32 s40, 0'); a('s_mov_b32 s41, -1')
        a('v_cndmask_b32 v%d, v%d, v15, s[40:41]' % (q2, q2))
        a('v_cndmask_b32 v%d, v%d, v14, s[40:41]' % (q2 + 1, q2 + 1))

def att_epilogue(a):
    G = helpers()
    sel_layer(a, 's44', L.O_[0], L.O_[1])
    a('s_mul_i32 s45, %s, 80' % sJ); a('s_mul_i32 s40, %s, 20' % sW); a('s_add_u32 s45, s45, s40')
    a('v_lshrrev_b32 v8, 5, %s' % vLANE); a('v_lshlrev_b32 v8, 2, v8'); a('v_add_u32 v8, s45, v8')
    a('v_lshrrev_b32 v9, 4, %s' % vLANE); a('v_and_b32 v9, 1, v9'); a('s_lshl_b32 s40, %s, 2' % sC); a('v_add_u32 v9, s40, v9')
    a('v_mul_u32_u24 v9, %d, v9' % (20 * 1024)); a('v_lshlrev_b32 v10, 4, %s' % vROW); a('v_add_u32 v9, v9, v10')
    for q in range(3):
        a('v_add_u32 v10, %d, v8' % (8 * q))
        a('v_lshrrev_b32 v11, 5, v10'); a('v_lshlrev_b32 v11, 10, v11')
        a('v_bfe_u32 v12, v10, 3, 2'); a('v_lshlrev_b32 v12, 8, v12'); a('v_add_u32 v11, v11, v12')
        a('v_bfe_u32 v12, v10, 2, 1'); a('v_lshlrev_b32 v12, 3, v12'); a('v_add_u32 v11, v11, v12')
        a('v_add_u32 v%d, v9, v11' % (16 + q))
    for rh, O in ((0, OA), (1, OB)):
        a('v_mov_b32 v12, v%d' % (O + 8)); a('v_mov_b32 v13, v%d' % (O + 8))
        a('v_permlane32_swap_b32 v12, v13')
        a('v_rcp_f32 v13, v13')
        for r in range(12): a('v_mul_f32 v%d, v%d, v13' % (O + r, O + r))
        for t in range(6): a('v_cvt_pk_bf16_f32 v%d, v%d, v%d' % (20 + 6 * rh + t, O + 2 * t, O + 2 * t + 1))
        a('s_add_u32 s46, s44, %d' % (rh * 2 * 20 * 1024))
        b = 20 + 6 * rh
        a('buffer_store_dwordx2 v[%d:%d], v16, %s, s46 offen sc1' % (b, b + 1, S_WS))
        a('buffer_store_dwordx2 v[%d:%d], v17, %s, s46 offen sc1' % (b + 2, b + 3, S_WS))
        a('s_mov_b32 exec_lo, -1'); a('s_mov_b32 exec_hi, 0')
        a('buffer_store_dwordx2 v[%d:%d], v18, %s, s46 offen sc1' % (b + 4, b + 5, S_WS))
        a('s_mov_b64 exec, -1')
    G.signal_cluster(a, lambda: flagval(1)(a))

def tile_stores(a, PK, srd, sbase_even_odd):
    pass

def res_epilogue(a, ACC, tiled_base_reg, stats_base, final):
    PKD = 48
    for t in range(10): a('v_cvt_pk_bf16_f32 v%d, v%d, v%d' % (PKD + t, ACC + 2 * t, ACC + 2 * t + 1))
    le, ld = a.newlabel('RE_odd'), a.newlabel('RE_done')
    if not final:
        a('s_lshl_b32 s40, %s, 2' % sC); a('s_add_u32 s40, s40, %s' % sW); a('s_mul_i32 s40, s40, 20')
        a('s_mul_i32 s41, %s, 5' % sJ); a('s_lshr_b32 s41, s41, 1'); a('s_add_u32 s40, s40, s41'); a('s_lshl_b32 s40, s40, 10'); a('s_add_u32 s40, s40, %s' % tiled_base_reg)
        voff, srd, step, fl = vL16, S_WS, 1024, 'sc1'
    else:
        import gen1 as G
        G.rowmajor_voff(a, 'v8', 'v9')
        a('s_mul_i32 s41, %s, 5' % sJ); a('s_lshr_b32 s41, s41, 1'); a('s_lshl_b32 s40, s41, 6')
        voff, srd, step, fl = 'v8', S_OUT, 64, ''
    a('s_bitcmp1_b32 %s, 0' % sJ); a('s_cbranch_scc1 %s' % le)
    a('buffer_store_dwordx4 v[%d:%d], %s, %s, s40 offen %s' % (PKD, PKD + 3, voff, srd, fl))
    a('s_add_u32 s41, s40, %d' % step)
    a('buffer_store_dwordx4 v[%d:%d], %s, %s, s41 offen %s' % (PKD + 4, PKD + 7, voff, srd, fl))
    a('s_add_u32 s41, s40, %d' % (2 * step))
    a('buffer_store_dwordx2 v[%d:%d], %s, %s, s41 offen %s' % (PKD + 8, PKD + 9, voff, srd, fl))
    a('s_branch %s' % ld)
    a.label(le)
    a('buffer_store_dwordx2 v[%d:%d], %s, %s, s40 offen offset:8 %s' % (PKD, PKD + 1, voff, srd, fl))
    a('s_add_u32 s41, s40, %d' % step)
    a('buffer_store_dwordx4 v[%d:%d], %s, %s, s41 offen %s' % (PKD + 2, PKD + 5, voff, srd, fl))
    a('s_add_u32 s41, s40, %d' % (2 * step))
    a('buffer_store_dwordx4 v[%d:%d], %s, %s, s41 offen %s' % (PKD + 6, PKD + 9, voff, srd, fl))
    a.label(ld)
    if not final:
        import gen1 as G
        for t in range(10): a('v_accvgpr_write_b32 a%d, v%d' % (RES + t, PKD + t))
        G.stats_regs(a, ACC, 60)
        G.store_stats(a, 60, stats_base)

def gemm_mtile(a, nks, act_regs, wread, ACC, lds_of):
    pass

def wo(a):
    G = helpers()
    G.wait_cluster(a, lambda: flagval(1)(a))
    a('s_mul_i32 s40, %s, %d' % (sJ, 100 * 1024)); a('s_mul_i32 s44, %s, %d' % (sW, 25 * 1024)); a('s_add_u32 s45, s40, s44'); a('s_add_u32 s45, s45, %d' % L.WO_T)
    for f in range(25):
        a('s_add_u32 m0, s44, %d' % (f * 1024))
        a('buffer_load_dwordx4 %s, %s, s45 offen sc1 lds' % (vL16, S_WS), tag='w')
        a('s_add_u32 s45, s45, 1024')
    sel_layer(a, 's46', L.O_[0], L.O_[1])
    a('s_lshl_b32 s40, %s, 2' % sC); a('s_add_u32 s40, s40, %s' % sW); a('s_mul_i32 s40, s40, 20480'); a('s_add_u32 s46, s46, s40')
    for s in range(20):
        a('buffer_load_dwordx4 v[%d:%d], %s, %s, s46 offen sc1' % (96 + 4 * s, 99 + 4 * s, vL16, S_WS), tag='act')
        if s < 19: a('s_add_u32 s46, s46, 1024')
    ACC = 16
    G.unpack_res(a, ACC)
    a.wait_vm('act')
    a('s_barrier')
    def rd(s):
        b = 176 + 20 * (s & 1)
        for t in range(5):
            o = (s * 5 + t) * 1024
            a('ds_read_b128 v[%d:%d], %s offset:%d' % (b + 4 * t, b + 4 * t + 3, 'v8' if o < 65536 else 'v9', o if o < 65536 else o - 65536), tag=s)
    a('v_mov_b32 v8, %s' % vL16); a('v_add_u32 v9, 0x10000, %s' % vL16)
    rd(0)
    for s in range(20):
        if s + 1 < 20: rd(s + 1)
        a.wait_lg(s)
        b = 176 + 20 * (s & 1)
        for t in range(5):
            a('v_mfma_f32_16x16x32_bf16 v[%d:%d], v[%d:%d], v[%d:%d], v[%d:%d]' % (ACC + 4 * t, ACC + 4 * t + 3, b + 4 * t, b + 4 * t + 3, 96 + 4 * s, 99 + 4 * s, ACC + 4 * t, ACC + 4 * t + 3))
    sel_layer(a, 's47', L.X1_[0], L.X1_[1]); sel_layer(a, 's48', L.ST1_[0], L.ST1_[1])
    res_epilogue(a, ACC, 's47', 's48', False)
    G.signal_cluster(a, lambda: flagval(2)(a))

def ffn1(a):
    G = helpers()
    G.wait_cluster(a, lambda: flagval(2)(a))
    for i in range(4): a('s_mov_b32 s%d, s%d' % (24 + i, 8 + i))
    sel_layer(a, 's47', L.X1_[0], L.X1_[1]); sel_layer(a, 's48', L.ST1_[0], L.ST1_[1])
    a('s_lshl_b32 s40, %s, 2' % sC); a('s_add_u32 s40, s40, %s' % sW); a('s_mul_i32 s40, s40, 20480'); a('s_add_u32 s47, s47, s40')
    a('s_mov_b32 s46, 1024')
    load_x_tile(a, vL16, 's46', 's47')
    row_stats_issue(a, 's48', 16)
    a('s_mul_i32 s49, %s, 12' % sJ); a('s_mul_i32 s40, %s, 3' % sW); a('s_add_u32 s49, s49, s40')
    a('v_lshlrev_b32 v9, 4, %s' % vG)
    a('s_lshl_b32 s50, s49, 6')
    for kq in range(4):
        a('s_add_u32 s41, s50, %d' % (L.CS1 + kq * 96 * 64))
        for t in range(3):
            a('buffer_load_dwordx4 v[%d:%d], v9, %s, s41 offen offset:%d sc1' % (64 + 12 * kq + 4 * t, 67 + 12 * kq + 4 * t, S_WS, 64 * t), tag='cs')
    a('s_add_u32 s41, s50, %d' % L.B1P)
    for t in range(3):
        a('buffer_load_dwordx4 v[%d:%d], v9, %s, s41 offen offset:%d sc1' % (112 + 4 * t, 115 + 4 * t, S_WS, 64 * t), tag='cs')
    row_stats_finish(a, 16)
    a('s_lshl_b32 s40, %s, 2' % sJ); a('s_add_u32 s40, s40, %s' % sW); a('s_mul_i32 s40, s40, %d' % (60 * 1024)); a('s_add_u32 s40, s40, %d' % L.W1_T)
    a.wait_vm('cs')
    for f in range(60):
        a('buffer_load_dwordx4 a[%d:%d], %s, %s, s40 offen sc1' % (4 * f, 4 * f + 3, vL16, S_WS), tag='w')
        if f < 59: a('s_add_u32 s40, s40, 1024')
    for kq in range(1, 4):
        for h in range(6):
            a('v_pk_add_f32 v[%d:%d], v[%d:%d], v[%d:%d]' % (64 + 2 * h, 65 + 2 * h, 64 + 2 * h, 65 + 2 * h, 64 + 12 * kq + 2 * h, 65 + 12 * kq + 2 * h))
    CS, B1 = 64, 112
    a.wait_vm('w'); a.wait_lg0()
    a('s_barrier')
    sel_layer(a, 's44', L.H_[0], L.H_[1])
    a('s_lshl_b32 s40, %s, 2' % sC); a('s_mul_i32 s40, s40, 48'); a('s_lshr_b32 s41, s49, 1'); a('s_add_u32 s40, s40, s41'); a('s_lshl_b32 s40, s40, 10'); a('s_add_u32 s44, s44, s40')
    a('v_mov_b32 v8, %s' % vL16)
    a('v_lshlrev_b32 v10, 3, %s' % vROW); a('v_add_u32 v10, %d, v10' % LDS_STATS)
    a('s_mov_b32 s53, 4')
    ACC = 16
    ffn1_consts(a)
    lp = a.newlabel('FFN1_pass')
    a.label(lp)
    for r in range(12): a('v_mov_b32 v%d, 0' % (ACC + r))
    a('ds_read_b64 v[12:13], v10')
    def rd(s):
        b = 32 + 4 * (s % 4)
        a('ds_read_b128 v[%d:%d], v8 offset:%d' % (b, b + 3, s * 1024), tag=s)
    a.lg = ['st']
    rd(0); rd(1); rd(2)
    for s in range(20):
        if s + 3 < 20: rd(s + 3)
        a.wait_lg(s)
        b = 32 + 4 * (s % 4)
        for t in range(3):
            f = s * 3 + t
            a('v_mfma_f32_16x16x32_bf16 v[%d:%d], a[%d:%d], v[%d:%d], v[%d:%d]' % (ACC + 4 * t, ACC + 4 * t + 3, 4 * f, 4 * f + 3, b, b + 3, ACC + 4 * t, ACC + 4 * t + 3))
    for r in range(12):
        z, t1, t2 = ACC + r, 48 + (r % 4) * 2, 49 + (r % 4) * 2
        a('v_fma_f32 v%d, v13, v%d, v%d' % (t1, CS + r, B1 + r))
        a('v_fma_f32 v%d, v%d, v12, v%d' % (z, z, t1))
        a('v_mul_f32 v%d, v%d, v%d' % (t1, z, z))
        a('v_fma_f32 v%d, v%d, v14, v15' % (t1, t1))
        a('v_mul_f32 v%d, v%d, v%d' % (t1, t1, z))
        a('v_exp_f32 v%d, v%d' % (t1, t1))
        a('v_add_f32 v%d, 1.0, v%d' % (t1, t1))
        a('v_rcp_f32 v%d, v%d' % (t1, t1))
        a('v_mul_f32 v%d, v%d, v%d' % (z, z, t1))
    for t in range(6): a('v_cvt_pk_bf16_f32 v%d, v%d, v%d' % (56 + t, ACC + 2 * t, ACC + 2 * t + 1))
    lo, ld = a.newlabel('F1_odd'), a.newlabel('F1_st')
    a('s_bitcmp1_b32 %s, 0' % sW); a('s_cbranch_scc1 %s' % lo)
    a('buffer_store_dwordx4 v[56:59], %s, %s, s44 offen sc1' % (vL16, S_WS))
    a('s_add_u32 s41, s44, 1024')
    a('buffer_store_dwordx2 v[60:61], %s, %s, s41 offen sc1' % (vL16, S_WS))
    a('s_branch %s' % ld)
    a.label(lo)
    a('buffer_store_dwordx2 v[56:57], %s, %s, s44 offen offset:8 sc1' % (vL16, S_WS))
    a('s_add_u32 s41, s44, 1024')
    a('buffer_store_dwordx4 v[58:61], %s, %s, s41 offen sc1' % (vL16, S_WS))
    a.label(ld)
    a('s_add_u32 s44, s44, %d' % (48 * 1024))
    a('v_add_u32 v8, %d, v8' % (20 * 1024)); a('v_add_u32 v10, 128, v10')
    a('s_sub_u32 s53, s53, 1'); a('s_cmp_lg_u32 s53, 0'); a('s_cbranch_scc1 %s' % lp)
    a.lg = []
    G.signal_cluster(a, lambda: flagval(3)(a))

def ffn1_consts(a):
    a('v_mov_b32 v14, %s' % f2b(G2)); a('v_mov_b32 v15, %s' % f2b(G1))

def ffn2(a):
    G = helpers()
    G.wait_cluster(a, lambda: flagval(3)(a))
    NS, NCH = 6, 12
    a('s_mul_i32 s45, %s, %d' % (sJ, 240 * 1024)); a('s_mul_i32 s44, %s, %d' % (sW, 5 * 1024)); a('s_add_u32 s45, s45, s44'); a('s_add_u32 s45, s45, %d' % L.W2_T)
    sel_layer(a, 's46', L.H_[0], L.H_[1])
    a('s_lshl_b32 s40, %s, 2' % sC); a('s_add_u32 s40, s40, %s' % sW); a('s_mul_i32 s40, s40, %d' % (48 * 1024)); a('s_add_u32 s46, s46, s40')
    def issue(ch):
        slot = ch % NS
        for t in range(5):
            a('s_add_u32 m0, s44, %d' % (slot * 20480 + t * 1024))
            a('s_add_u32 s40, s45, %d' % (t * 1024))
            a('buffer_load_dwordx4 %s, %s, s40 offen sc1 lds' % (vL16, S_WS), tag=('ch', ch))
        a('s_add_u32 s45, s45, 20480')
        for i in range(4):
            r = 96 + 16 * slot + 4 * i
            a('buffer_load_dwordx4 v[%d:%d], %s, %s, s46 offen sc1' % (r, r + 3, vL16, S_WS), tag=('ch', ch))
            a('s_add_u32 s46, s46, 1024')
    for ch in range(NS - 1): issue(ch)
    ACC = 16
    G.unpack_res(a, ACC)
    a('s_mul_i32 s40, %s, %d' % (sJ, 5 * 64)); a('s_add_u32 s40, s40, %d' % L.B2P); a('v_lshlrev_b32 v9, 4, %s' % vG)
    for t in range(5):
        a('buffer_load_dwordx4 v[%d:%d], v9, %s, s40 offen offset:%d sc1' % (40 + 4 * t, 43 + 4 * t, S_WS, 64 * t), tag='b2')
    a('v_mov_b32 v8, %s' % vL16); a('v_add_u32 v9, 0x10000, %s' % vL16)
    a.wait_vm('b2')
    for r in range(20): a('v_add_f32 v%d, v%d, v%d' % (ACC + r, ACC + r, 40 + r))
    a.vm = []
    def rd(ch, i):
        b = 196 + 20 * (i & 1)
        o = (ch % NS) * 20480 + i * 5120
        for t in range(5):
            oo = o + t * 1024
            a('ds_read_b128 v[%d:%d], %s offset:%d' % (b + 4 * t, b + 4 * t + 3, 'v8' if oo < 65536 else 'v9', oo if oo < 65536 else oo - 65536), tag=(ch, i))
    pending = []
    for ch in range(NCH):
        if ch >= NS - 1:
            a.wait_vm(('ch', ch))
        a('s_barrier')
        if ch + NS - 1 < NCH: issue(ch + NS - 1)
        rd(ch, 0)
        for i in range(4):
            if i + 1 < 4: rd(ch, i + 1)
            a.wait_lg((ch, i))
            b = 196 + 20 * (i & 1); r = 96 + 16 * (ch % NS) + 4 * i
            for t in range(5):
                a('v_mfma_f32_16x16x32_bf16 v[%d:%d], v[%d:%d], v[%d:%d], v[%d:%d]' % (ACC + 4 * t, ACC + 4 * t + 3, b + 4 * t, b + 4 * t + 3, r, r + 3, ACC + 4 * t, ACC + 4 * t + 3))
    lf, ld = a.newlabel('F2_final'), a.newlabel('F2_done')
    a('s_cmp_eq_u32 %s, 0' % sP); a('s_cbranch_scc0 %s' % lf)
    a('s_mov_b32 s47, %d' % L.X2_[0]); a('s_mov_b32 s48, %d' % L.ST2_[0])
    res_epilogue(a, ACC, 's47', 's48', False)
    G.signal_cluster(a, lambda: a('s_mov_b32 s43, 4'))
    a('s_branch %s' % ld)
    a.label(lf)
    res_epilogue(a, ACC, None, None, True)
    a.wait_vm0()
    a.label(ld)
```

```python
import sys, os
sys.path.insert(0, os.path.dirname(os.path.abspath(__file__)))
from asmlib import Asm
import layout as L

KNAME = 'interleave_layers__grouped_kv_mqa__dense_activation_gelu__prompt_kernel'
STOP = int(os.environ.get('STOP', '99'))

S_WS, S_X, S_OUT, S_DBG, S_TMP = 's[8:11]', 's[12:15]', 's[16:19]', 's[20:23]', 's[24:27]'
sW, sC, sJ, sROLE, sP = 's28', 's29', 's30', 's31', 's32'
P_X, P_WQ, P_WK, P_WV, P_WO, P_BX, P_W1, P_B1, P_W2, P_B2, P_OUT, P_DBG, P_WS = [64 + 2 * i for i in range(13)]
vTID, vLANE, vL16, vROW, vG = 'v0', 'v1', 'v2', 'v3', 'v4'
RES = 246
SPIN = 50000

def srd(a, dst, ptr, size):
    a('s_mov_b32 s%d, s%d' % (dst, ptr))
    a('s_and_b32 s%d, s%d, 0xffff' % (dst + 1, ptr + 1))
    a('s_mov_b32 s%d, 0x%x' % (dst + 2, size))
    a('s_mov_b32 s%d, 0x20000' % (dst + 3))

def setup(a):
    a('s_cmp_ge_u32 s2, 256')
    a('s_cbranch_scc1 L_END')
    a('s_load_dwordx16 s[64:79], s[0:1], 0')
    a('s_load_dwordx8 s[80:87], s[0:1], 64')
    a('s_load_dwordx2 s[88:89], s[0:1], 96')
    a('v_lshrrev_b32 v5, 6, v0')
    a('v_and_b32 v1, 63, v0')
    a('v_readfirstlane_b32 %s, v5' % sW)
    a('v_lshlrev_b32 v2, 4, v1')
    a('v_and_b32 v3, 15, v1')
    a('v_lshrrev_b32 v4, 4, v1')
    a('s_lshr_b32 %s, s2, 3' % sJ)
    a('s_and_b32 %s, %s, 7' % (sJ, sJ))
    a('s_and_b32 s3, s2, 7')
    a('s_lshl_b32 s3, s3, 2')
    a('s_lshr_b32 %s, s2, 6' % sC)
    a('s_add_u32 %s, %s, s3' % (sC, sC))
    a('s_lshl_b32 %s, %s, 3' % (sROLE, sC))
    a('s_add_u32 %s, %s, %s' % (sROLE, sROLE, sJ))
    a('s_waitcnt lgkmcnt(0)')
    srd(a, 8, P_WS, L.WS_USED)
    srd(a, 12, P_X, L.S * L.D * 2)
    srd(a, 16, P_OUT, L.S * L.D * 2)
    srd(a, 20, P_DBG, 256)

def gather(a, F, voff, sbase, const, RS):
    for jj in range(8):
        a('s_add_u32 s40, %s, %d' % (sbase, const + jj * RS))
        a('buffer_load_short_d16%s v%d, %s, %s, s40 offen' % ('_hi' if jj & 1 else '', F + jj // 2 + (4 if jj & 1 else 0), voff, S_TMP))

def gather_merge(a, F):
    for r in range(4):
        a('v_and_b32 v%d, 0xffff, v%d' % (F + r, F + r))
        a('v_and_b32 v%d, 0xffff0000, v%d' % (F + 4 + r, F + 4 + r))
        a('v_or_b32 v%d, v%d, v%d' % (F + r, F + r, F + 4 + r))

def colperm_v(a, dst, sT, tmp):
    a('s_lshr_b32 s41, %s, 1' % sT)
    a('s_lshl_b32 s41, s41, 5')
    a('s_and_b32 s42, %s, 1' % sT)
    a('s_lshl_b32 s42, s42, 2')
    a('s_add_u32 s41, s41, s42')
    a('v_lshrrev_b32 %s, 2, %s' % (tmp, vROW))
    a('v_lshlrev_b32 %s, 3, %s' % (tmp, tmp))
    a('v_and_b32 %s, 3, %s' % (dst, vROW))
    a('v_add_u32 %s, %s, %s' % (dst, dst, tmp))
    a('v_add_u32 %s, s41, %s' % (dst, dst))
    a('v_lshlrev_b32 %s, 1, %s' % (dst, dst))

def ones(a, r):
    for i in range(4): a('v_mov_b32 v%d, 0x3f803f80' % (r + i))

def prep_task16(a, name, ptr, size, RS, nfr, dest_fn, cs_dest):
    srd(a, 24, ptr, size)
    colperm = name not in ('wkv',)
    if colperm:
        colperm_v(a, 'v8', 's43', 'v9')
    else:
        a('s_lshl_b32 s41, s43, 4')
        a('v_add_u32 v8, s41, %s' % vROW)
        a('v_cmp_gt_u32 vcc, 20, v8')
        a('v_lshlrev_b32 v8, 1, v8')
        a('v_mov_b32 v9, 0x40000000')
        a('v_cndmask_b32 v8, v9, v8, vcc')
    a('v_mul_u32_u24 v9, %d, %s' % (8 * RS, vG))
    a('v_add_u32 v8, v8, v9')
    a('s_mul_i32 s46, s44, %d' % (32 * RS))
    for f in range(nfr):
        gather(a, 96 + 8 * f, 'v8', 's46', f * 32 * RS, RS)
    stride = dest_fn(a)
    if cs_dest is not None:
        ones(a, 12)
        for r in range(4): a('v_mov_b32 v%d, 0' % (64 + r))
    a.wait_vm0()
    for f in range(nfr): gather_merge(a, 96 + 8 * f)
    for f in range(nfr):
        a('s_add_u32 s40, s45, %d' % (f * stride))
        a('buffer_store_dwordx4 v[%d:%d], %s, %s, s40 offen sc1' % (96 + 8 * f, 99 + 8 * f, vL16, S_WS))
        if cs_dest is not None:
            a('v_mfma_f32_16x16x32_bf16 v[64:67], v[%d:%d], v[12:15], v[64:67]' % (96 + 8 * f, 99 + 8 * f))
    if cs_dest is not None:
        cs_dest(a)
        a('v_lshlrev_b32 v9, 4, %s' % vG)
        a('v_cmp_eq_u32 vcc, 0, %s' % vROW)
        a('s_and_saveexec_b64 s[46:47], vcc')
        a('buffer_store_dwordx4 v[64:67], v9, %s, s45 offen sc1' % S_WS)
        a('s_mov_b64 exec, s[46:47]')

def prep(a):
    a.comment('---- prep: re-tile weights')
    a('s_lshl_b32 s33, s2, 2')
    a('s_add_u32 s33, s33, %s' % sW)
    lab = {n: a.newlabel('PREP_' + n) for n in ('w2', 'wo', 'wq', 'wkv', 'misc', 'done')}
    a('s_cmp_ge_u32 s33, 384'); a('s_cbranch_scc1 %s' % lab['w2'])
    a('s_lshr_b32 s43, s33, 2'); a('s_and_b32 s47, s33, 3'); a('s_mul_i32 s44, s47, 5')
    def d1(a):
        a('s_mul_i32 s45, s43, 171'); a('s_lshr_b32 s45, s45, 9')
        a('s_mul_i32 s48, s45, 3'); a('s_sub_u32 s48, s43, s48')
        a('s_mul_i32 s45, s45, 20'); a('s_add_u32 s45, s45, s44'); a('s_mul_i32 s45, s45, 3'); a('s_add_u32 s45, s45, s48')
        a('s_lshl_b32 s45, s45, 10'); a('s_add_u32 s45, s45, %d' % L.W1_T)
        return 3 * 1024
    def c1(a):
        a('s_and_b32 s47, s33, 3'); a('s_mul_i32 s45, s47, 96'); a('s_add_u32 s45, s45, s43'); a('s_lshl_b32 s45, s45, 6'); a('s_add_u32 s45, s45, %d' % L.CS1)
    prep_task16(a, 'w1', P_W1, L.D * L.F * 2, L.F * 2, 5, d1, c1)
    a('s_branch %s' % lab['done'])
    a.label(lab['w2'])
    a('s_cmp_ge_u32 s33, 704'); a('s_cbranch_scc1 %s' % lab['wo'])
    a('s_sub_u32 s47, s33, 384'); a('s_lshr_b32 s43, s47, 3'); a('s_and_b32 s47, s47, 7'); a('s_mul_i32 s44, s47, 6')
    def d5(base, ns):
        def f(a):
            a('s_mul_i32 s45, s43, 205'); a('s_lshr_b32 s45, s45, 10')
            a('s_mul_i32 s48, s45, 5'); a('s_sub_u32 s48, s43, s48')
            a('s_mul_i32 s45, s45, %d' % ns); a('s_add_u32 s45, s45, s44'); a('s_mul_i32 s45, s45, 5'); a('s_add_u32 s45, s45, s48')
            a('s_lshl_b32 s45, s45, 10'); a('s_add_u32 s45, s45, %d' % base)
            return 5 * 1024
        return f
    prep_task16(a, 'w2', P_W2, L.F * L.D * 2, L.D * 2, 6, d5(L.W2_T, 48), None)
    a('s_branch %s' % lab['done'])
    a.label(lab['wo'])
    a('s_cmp_ge_u32 s33, 864'); a('s_cbranch_scc1 %s' % lab['wq'])
    a('s_sub_u32 s47, s33, 704'); a('s_lshr_b32 s43, s47, 2'); a('s_and_b32 s47, s47, 3'); a('s_mul_i32 s44, s47, 5')
    prep_task16(a, 'wo', P_WO, L.D * L.D * 2, L.D * 2, 5, d5(L.WO_T, 20), None)
    a('s_branch %s' % lab['done'])
    a.label(lab['wq'])
    a('s_cmp_ge_u32 s33, 992'); a('s_cbranch_scc1 %s' % lab['wkv'])
    a('s_sub_u32 s47, s33, 864'); a('s_lshr_b32 s43, s47, 2'); a('s_and_b32 s47, s47, 3'); a('s_mul_i32 s44, s47, 10')
    srd(a, 24, P_WQ, L.D * L.D * 2)
    a('v_and_b32 v8, 31, %s' % vLANE)
    a('v_cmp_gt_u32 vcc, 20, v8')
    a('s_mul_i32 s41, s43, 20')
    a('v_add_u32 v8, s41, v8')
    a('v_lshlrev_b32 v8, 1, v8')
    a('v_mov_b32 v9, 0x40000000')
    a('v_cndmask_b32 v8, v9, v8, vcc')
    a('v_lshrrev_b32 v9, 5, %s' % vLANE)
    a('v_mul_u32_u24 v9, %d, v9' % (8 * 1280))
    a('v_add_u32 v8, v8, v9')
    a('s_mul_i32 s46, s44, %d' % (16 * 1280))
    for f in range(10):
        gather(a, 96 + 8 * f, 'v8', 's46', f * 16 * 1280, 1280)
    a('s_mul_i32 s45, s43, 40'); a('s_add_u32 s45, s45, s44'); a('s_lshl_b32 s45, s45, 10'); a('s_add_u32 s45, s45, %d' % L.WQ_T)
    ones(a, 12)
    for r in range(16): a('v_mov_b32 v%d, 0' % (64 + r))
    a.wait_vm0()
    for f in range(10): gather_merge(a, 96 + 8 * f)
    for f in range(10):
        a('s_add_u32 s40, s45, %d' % (f * 1024))
        a('buffer_store_dwordx4 v[%d:%d], %s, %s, s40 offen sc1' % (96 + 8 * f, 99 + 8 * f, vL16, S_WS))
        a('v_mfma_f32_32x32x16_bf16 v[64:79], v[%d:%d], v[12:15], v[64:79]' % (96 + 8 * f, 99 + 8 * f))
    a('s_and_b32 s47, s33, 3'); a('s_lshl_b32 s45, s47, 5'); a('s_add_u32 s45, s45, s43'); a('s_lshl_b32 s45, s45, 7'); a('s_add_u32 s45, s45, %d' % L.CSQ)
    a('v_lshrrev_b32 v9, 5, %s' % vLANE); a('v_lshlrev_b32 v9, 4, v9')
    a('v_and_b32 v10, 31, %s' % vLANE); a('v_cmp_eq_u32 vcc, 0, v10')
    a('s_and_saveexec_b64 s[46:47], vcc')
    for q in range(4):
        a('buffer_store_dwordx4 v[%d:%d], v9, %s, s45 offen offset:%d sc1' % (64 + 4 * q, 67 + 4 * q, S_WS, 32 * q))
    a('s_mov_b64 exec, s[46:47]')
    a('s_branch %s' % lab['done'])
    a.label(lab['wkv'])
    a('s_cmp_ge_u32 s33, 1008'); a('s_cbranch_scc1 %s' % lab['misc'])
    a('s_sub_u32 s47, s33, 992'); a('s_lshr_b32 s49, s47, 3')
    a('s_lshr_b32 s43, s47, 2'); a('s_and_b32 s43, s43, 1'); a('s_and_b32 s47, s47, 3'); a('s_mul_i32 s44, s47, 5')
    a('s_cmp_eq_u32 s49, 0')
    a('s_cselect_b32 s50, s%d, s%d' % (P_WK, P_WV)); a('s_cselect_b32 s51, s%d, s%d' % (P_WK + 1, P_WV + 1))
    def dkv(a):
        a('s_and_b32 s47, s33, 3'); a('s_lshl_b32 s45, s49, 2'); a('s_add_u32 s45, s45, s47'); a('s_mul_i32 s45, s45, 10'); a('s_add_u32 s45, s45, s43')
        a('s_lshl_b32 s45, s45, 10'); a('s_add_u32 s45, s45, %d' % L.WKV_T)
        return 2 * 1024
    def ckv(a):
        a('s_and_b32 s47, s33, 3'); a('s_lshl_b32 s45, s47, 1'); a('s_add_u32 s45, s45, s49'); a('s_lshl_b32 s45, s45, 1'); a('s_add_u32 s45, s45, s43')
        a('s_lshl_b32 s45, s45, 6'); a('s_add_u32 s45, s45, %d' % L.CSKV)
    prep_task16(a, 'wkv', 50, L.D * 20 * 2, 40, 5, dkv, ckv)
    a('s_branch %s' % lab['done'])
    a.label(lab['misc'])
    a('s_sub_u32 s47, s33, 1008')
    lb2 = a.newlabel('PREP_b2')
    a('s_cmp_ge_u32 s47, 8'); a('s_cbranch_scc1 %s' % lb2)
    def bias(ptr, n, dest, first, iters):
        srd(a, 24, ptr, n * 2)
        for it in range(iters):
            a('s_mul_i32 s41, %s, %d' % (first, iters)); a('s_add_u32 s41, s41, %d' % it); a('s_lshl_b32 s41, s41, 6')
            a('v_add_u32 v8, s41, %s' % vLANE)
            a('v_lshrrev_b32 v9, 5, v8'); a('v_lshlrev_b32 v9, 5, v9')
            a('v_lshrrev_b32 v10, 4, v8'); a('v_and_b32 v10, 1, v10'); a('v_lshlrev_b32 v10, 2, v10'); a('v_add_u32 v9, v9, v10')
            a('v_lshrrev_b32 v10, 2, %s' % vROW); a('v_lshlrev_b32 v10, 3, v10'); a('v_add_u32 v9, v9, v10')
            a('v_and_b32 v10, 3, %s' % vROW); a('v_add_u32 v9, v9, v10'); a('v_lshlrev_b32 v9, 1, v9')
            a('buffer_load_ushort v11, v9, %s, 0 offen' % S_TMP)
            a('v_lshlrev_b32 v8, 2, v8')
            a('v_cmp_gt_u32 vcc, %d, v8' % (n * 4))
            a.wait_vm0()
            a('v_lshlrev_b32 v11, 16, v11')
            a('s_and_saveexec_b64 s[50:51], vcc')
            a('s_mov_b32 s45, %d' % dest)
            a('buffer_store_dword v11, v8, %s, s45 offen sc1' % S_WS)
            a('s_mov_b64 exec, s[50:51]')
    bias(P_B1, L.F, L.B1P, 's47', 3)
    a('s_branch %s' % lab['done'])
    a.label(lb2)
    a('s_sub_u32 s47, s47, 8')
    bias(P_B2, L.D, L.B2P, 's47', 2)
    a.label(lab['done'])
    a.vm = []

def unpack_res(a, dst, src_is_agpr=True):
    for t in range(10):
        a('v_accvgpr_read_b32 v%d, a%d' % (dst + 2 * t + 1, RES + t))
    for t in range(10):
        a('v_lshlrev_b32 v%d, 16, v%d' % (dst + 2 * t, dst + 2 * t + 1))
        a('v_and_b32 v%d, 0xffff0000, v%d' % (dst + 2 * t + 1, dst + 2 * t + 1))

def stats_regs(a, X, S0):
    a('v_pk_mul_f32 v[%d:%d], v[%d:%d], v[%d:%d]' % (S0 + 2, S0 + 3, X, X + 1, X, X + 1))
    a('v_pk_add_f32 v[%d:%d], v[%d:%d], v[%d:%d]' % (S0 + 4, S0 + 5, X, X + 1, X + 2, X + 3))
    a('v_pk_fma_f32 v[%d:%d], v[%d:%d], v[%d:%d], v[%d:%d]' % (S0 + 2, S0 + 3, X + 2, X + 3, X + 2, X + 3, S0 + 2, S0 + 3))
    for t in range(2, 10):
        a('v_pk_add_f32 v[%d:%d], v[%d:%d], v[%d:%d]' % (S0 + 4, S0 + 5, S0 + 4, S0 + 5, X + 2 * t, X + 2 * t + 1))
        a('v_pk_fma_f32 v[%d:%d], v[%d:%d], v[%d:%d], v[%d:%d]' % (S0 + 2, S0 + 3, X + 2 * t, X + 2 * t + 1, X + 2 * t, X + 2 * t + 1, S0 + 2, S0 + 3))
    a('v_add_f32 v%d, v%d, v%d' % (S0, S0 + 4, S0 + 5))
    a('v_add_f32 v%d, v%d, v%d' % (S0 + 1, S0 + 2, S0 + 3))

def store_stats(a, S0, base_sreg_or_const):
    a('s_lshl_b32 s40, %s, 2' % sC); a('s_add_u32 s40, s40, %s' % sW); a('s_lshl_b32 s40, s40, 3'); a('s_add_u32 s40, s40, %s' % sJ)
    a('s_lshl_b32 s40, s40, 9'); a('s_add_u32 s40, s40, %s' % base_sreg_or_const)
    a('v_lshlrev_b32 v%d, 3, %s' % (S0 + 2, vLANE))
    a('buffer_store_dwordx2 v[%d:%d], v%d, %s, s40 offen sc1' % (S0, S0 + 1, S0 + 2, S_WS), tag='st')

def rowmajor_voff(a, dst, tmp):
    a('s_lshl_b32 s40, %s, 6' % sC); a('s_lshl_b32 s41, %s, 4' % sW); a('s_add_u32 s40, s40, s41')
    a('v_add_u32 %s, s40, %s' % (dst, vROW))
    a('v_mul_u32_u24 %s, 1280, %s' % (dst, dst))
    a('v_lshlrev_b32 %s, 4, %s' % (tmp, vG))
    a('v_add_u32 %s, %s, %s' % (dst, dst, tmp))

def tile_col_bytes(T):
    return (32 * (T >> 1) + 4 * (T & 1)) * 2

def load_res0(a):
    a.comment('---- residual tile x0 and its row statistics')
    rowmajor_voff(a, 'v8', 'v9')
    a('s_mul_i32 s42, %s, 5' % sJ)
    for t in range(5):
        a('s_add_u32 s43, s42, %d' % t)
        a('s_lshr_b32 s44, s43, 1'); a('s_lshl_b32 s44, s44, 6'); a('s_and_b32 s43, s43, 1'); a('s_lshl_b32 s43, s43, 3'); a('s_add_u32 s44, s44, s43')
        a('buffer_load_dwordx2 v[%d:%d], v8, %s, s44 offen' % (16 + 2 * t, 17 + 2 * t, S_X), tag='res')
    a.wait_vm('res')
    for t in range(10): a('v_accvgpr_write_b32 a%d, v%d' % (RES + t, 16 + t))
    unpack_res(a, 32)
    stats_regs(a, 32, 56)
    store_stats(a, 56, str(L.ST0))

def zero_flags(a):
    lab = a.newlabel('ZF')
    a('s_cmp_eq_u32 %s, 0' % sW); a('s_cbranch_scc0 %s' % lab)
    a('v_mov_b32 v8, 0')
    a('s_lshl_b32 s40, %s, 7' % sC); a('s_lshl_b32 s41, %s, 2' % sJ); a('s_add_u32 s40, s40, s41'); a('s_add_u32 s40, s40, %d' % L.FLAGC)
    a('s_mov_b64 exec, 1')
    a('buffer_store_dword v8, v8, %s, s40 offen sc1' % S_WS)
    a('s_lshl_b32 s40, %s, 2' % sROLE); a('s_add_u32 s40, s40, %d' % L.FLAGKV)
    a('buffer_store_dword v8, v8, %s, s40 offen sc1' % S_WS)
    a('s_mov_b64 exec, -1')
    a.label(lab)

def spin(a, name, load, notready):
    l0, l1 = a.newlabel(name), a.newlabel(name + '_done')
    a('s_mov_b32 s42, %d' % SPIN)
    a.label(l0)
    load()
    a('s_waitcnt vmcnt(0)')
    notready()
    a('s_cmp_eq_u64 vcc, 0'); a('s_cbranch_scc1 %s' % l1)
    a('s_sleep 1')
    a('s_sub_u32 s42, s42, 1'); a('s_cmp_lg_u32 s42, 0'); a('s_cbranch_scc1 %s' % l0)
    a.label(l1)

def global_barrier_dbg(a):
    a.wait_all()
    a('s_barrier')
    lab = a.newlabel('GB')
    a('s_cmp_eq_u32 %s, 0' % sW); a('s_cbranch_scc0 %s' % lab)
    a('s_and_b32 s40, %s, 7' % sROLE); a('s_lshl_b32 s40, s40, 5')
    a('v_mov_b32 v8, s40'); a('v_mov_b32 v9, 1')
    a('s_mov_b64 exec, 1')
    a('buffer_atomic_add v9, v8, %s, 0 offen' % S_DBG)
    a('s_mov_b64 exec, 0xff')
    a('v_lshlrev_b32 v8, 5, %s' % vLANE)
    spin(a, 'GBP', lambda: a('buffer_load_dword v9, v8, %s, 0 offen sc1' % S_DBG), lambda: a('v_cmp_gt_u32 vcc, 32, v9'))
    a('s_mov_b64 exec, -1')
    a.label(lab)
    a('s_barrier')
    a.vm = []

def signal_cluster(a, val_code):
    a.wait_vm0()
    a('s_barrier')
    lab = a.newlabel('SIG')
    a('s_cmp_eq_u32 %s, 0' % sW); a('s_cbranch_scc0 %s' % lab)
    val_code()
    a('s_lshl_b32 s40, %s, 7' % sC); a('s_lshl_b32 s41, %s, 2' % sJ); a('s_add_u32 s40, s40, s41'); a('s_add_u32 s40, s40, %d' % L.FLAGC)
    a('v_mov_b32 v8, 0'); a('v_mov_b32 v9, s43')
    a('s_mov_b64 exec, 1')
    a('buffer_store_dword v9, v8, %s, s40 offen sc1' % S_WS)
    a('s_mov_b64 exec, -1')
    a.label(lab)

def wait_cluster(a, val_code):
    lab = a.newlabel('WC')
    a('s_cmp_eq_u32 %s, 0' % sW); a('s_cbranch_scc0 %s' % lab)
    val_code()
    a('s_lshl_b32 s40, %s, 7' % sC); a('s_add_u32 s40, s40, %d' % L.FLAGC)
    a('s_mov_b64 exec, 0xff')
    a('v_lshlrev_b32 v8, 2, %s' % vLANE)
    spin(a, 'WCP', lambda: a('buffer_load_dword v9, v8, %s, s40 offen sc1' % S_WS), lambda: a('v_cmp_gt_u32 vcc, s43, v9'))
    a('s_mov_b64 exec, -1')
    a.label(lab)
    a('s_barrier')
    a.vm = []

def dump(a, reg, slot):
    a('s_lshl_b32 s60, s2, 10'); a('s_add_u32 s60, s60, %d' % (L.DBGW + slot * 256 * 1024))
    a('v_lshlrev_b32 v255, 2, v0')
    a('buffer_store_dword v%d, v255, %s, s60 offen' % (reg, S_WS))
    a.vm.pop()

def phase_val(k):
    def f(a=None): pass
    return f

def stop_here(a, n):
    if STOP == n:
        a.wait_all()
        a('s_endpgm')

sys.modules.setdefault('gen1', sys.modules[__name__])
from phases1 import qkv, attention, wo, ffn1, ffn2

def build():
    a = Asm()
    setup(a)
    zero_flags(a)
    load_res0(a)
    prep(a)
    global_barrier_dbg(a)
    stop_here(a, 0)
    a('s_mov_b32 %s, 0' % sP)
    a.label('L_LAYER')
    qkv(a); stop_here(a, 1)
    attention(a); stop_here(a, 2)
    wo(a); stop_here(a, 3)
    ffn1(a); stop_here(a, 4)
    ffn2(a); stop_here(a, 5)
    a('s_add_u32 %s, %s, 1' % (sP, sP))
    a('s_cmp_lt_u32 %s, 2' % sP)
    a('s_cbranch_scc1 L_LAYER')
    a.label('L_END')
    a('s_endpgm')
    return a

HEADER = open(os.path.join(os.path.dirname(os.path.abspath(__file__)), 'header.txt')).read()
def emit(lds):
    a = build()
    body = a.render()
    s = HEADER + '; @launch grid=(256,1,1) block=(256,1,1) lds=%d\n' % lds
    s += '.amdgcn_target "amdgcn-amd-amdhsa--gfx950"\n.text\n.globl %s\n.p2align 8\n.type %s,@function\n%s:\n' % (KNAME, KNAME, KNAME)
    s += body
    s += '.section .rodata,"a"\n.p2align 6\n.amdhsa_kernel %s\n' % KNAME
    s += '  .amdhsa_next_free_vgpr 512\n  .amdhsa_next_free_sgpr 102\n  .amdhsa_accum_offset 256\n  .amdhsa_group_segment_fixed_size 0\n  .amdhsa_kernarg_size 104\n'
    s += '  .amdhsa_user_sgpr_count 2\n  .amdhsa_user_sgpr_kernarg_segment_ptr 1\n  .amdhsa_system_sgpr_workgroup_id_x 1\n.end_amdhsa_kernel\n'
    return s
if __name__ == '__main__':
    out = sys.argv[1] if len(sys.argv) > 1 else 'k1.s'
    open(out, 'w').write(emit(163840))
```

```python
import re

def _expand(tok):
    tok = tok.strip()
    neg = tok.lstrip('-')
    if neg.startswith('abs(') or neg.startswith('|'):
        neg = neg.replace('abs(', '').replace(')', '').replace('|', '')
    m = re.fullmatch(r'([vas])\[(\d+):(\d+)\]', neg)
    if m:
        return ['%s%d' % (m.group(1), i) for i in range(int(m.group(2)), int(m.group(3)) + 1)]
    m = re.fullmatch(r'([vas])(\d+)', neg)
    if m:
        return [neg]
    if neg == 'vcc': return ['vcc']
    if neg == 'exec': return ['exec']
    if neg == 'm0': return ['m0']
    return []

TRANS = ('v_exp_f32', 'v_log_f32', 'v_rcp_f32', 'v_rsq_f32', 'v_sqrt_f32', 'v_sin_f32', 'v_cos_f32')

class Ins:
    __slots__ = ('text', 'op', 'kind', 'wr', 'rd', 'rdA', 'rdC', 'passes', 'dpp', 'comment', 'nops')
    def __init__(self, text):
        self.text = text
        t = text.split(';')[0].strip()
        parts = t.split(None, 1)
        self.op = parts[0]
        rest = parts[1] if len(parts) > 1 else ''
        ops = [o.strip() for o in self._split(rest)]
        if ops:
            last = ops[-1].split()
            mods = last[1:]
            ops[-1] = last[0] if last else ''
        else:
            mods = []
        op = self.op
        self.wr = []; self.rd = []; self.rdA = []; self.rdC = []; self.passes = 0
        self.dpp = any(k in t for k in (' row_', 'quad_perm', ' wave_'))
        R = lambda i: _expand(ops[i]) if i < len(ops) else []
        allr = lambda a: [r for i in range(a, len(ops)) for r in R(i)]
        if op.startswith('v_mfma'):
            self.kind = 'mfma'
            self.passes = 4 if '16x16' in op else 8
            self.wr = R(0); self.rdA = R(1) + R(2); self.rdC = R(3); self.rd = self.rdA + self.rdC
        elif op.startswith('v_cmp'):
            self.kind = 'valu'; self.wr = R(0); self.rd = allr(1)
        elif op in ('v_readfirstlane_b32', 'v_readlane_b32'):
            self.kind = 'readlane'; self.wr = R(0); self.rd = allr(1)
        elif op.startswith('v_permlane'):
            self.kind = 'permlane'; self.wr = R(0) + R(1); self.rd = R(0) + R(1)
        elif op.startswith('v_'):
            base = op.replace('_e32', '').replace('_e64', '').replace('_dpp', '')
            self.kind = 'trans' if base in TRANS else ('dot' if base.startswith('v_dot') else 'valu')
            self.wr = R(0); self.rd = allr(1)
            if base in ('v_add_co_u32', 'v_sub_co_u32', 'v_addc_co_u32', 'v_subb_co_u32'):
                self.wr = R(0) + R(1); self.rd = allr(2)
            if base in ('v_fmac_f32', 'v_dot2c_f32_bf16', 'v_pk_fmac_f16') or self.dpp:
                self.rd = self.rd + R(0)
            if base == 'v_cndmask_b32' and len(ops) == 3:
                self.rd = self.rd + ['vcc']
        elif op.startswith('buffer_load') or op.startswith('global_load'):
            self.kind = 'vmem'
            if 'lds' in mods or op.startswith('global_load_lds'):
                self.rd = allr(0) + ['m0']; self.kind = 'dma'
            else:
                self.wr = R(0); self.rd = allr(1)
                if 'd16' in op: self.rd = self.rd + R(0)
        elif op.startswith('buffer_store') or op.startswith('global_store'):
            self.kind = 'store'; self.rd = allr(0)
            if 'x4' in op or 'x3' in op:
                i = 0 if op.startswith('buffer') else 1
                self.rdC = R(i)
        elif op.startswith('buffer_atomic') or op.startswith('global_atomic'):
            self.kind = 'store'; self.rd = allr(0)
            if 'sc0' in mods: self.wr = R(0)
        elif op.startswith('buffer_'):
            self.kind = 'other'
        elif op.startswith('ds_read') or op.startswith('ds_bpermute') or op.startswith('ds_swizzle'):
            self.kind = 'ds'; self.wr = R(0); self.rd = allr(1)
        elif op.startswith('ds_'):
            self.kind = 'ds'; self.rd = allr(0)
        elif op == 's_nop':
            self.kind = 'nop'; self.nops = int(ops[0], 0) + 1
        elif op.startswith('s_'):
            self.kind = 'salu'
            if op.startswith(('s_cmp', 's_cbranch', 's_branch', 's_waitcnt', 's_barrier', 's_endpgm', 's_sleep', 's_setprio', 's_bitcmp')):
                self.rd = allr(0)
            else:
                self.wr = R(0); self.rd = allr(1)
                if 'saveexec' in op: self.wr = self.wr + ['exec']
        else:
            raise ValueError('unknown instruction: ' + text)
    @staticmethod
    def _split(s):
        out = []; depth = 0; cur = ''
        for ch in s:
            if ch in '[(': depth += 1
            if ch in '])': depth -= 1
            if ch == ',' and depth == 0:
                out.append(cur); cur = ''
            else:
                cur += ch
        if cur.strip(): out.append(cur)
        return out
    def states(self):
        return self.nops if self.kind == 'nop' else 1

def isv(r): return r[0] in 'va' and r != 'vcc'
def iss(r): return (r[0] == 's' or r == 'vcc')

class HazardState:
    def __init__(self):
        self.pos = 0
        self.w = {}
        self.cread = {}
        self.stdata = {}
    def copy(self):
        h = HazardState(); h.pos = self.pos; h.w = dict(self.w); h.cread = dict(self.cread); h.stdata = dict(self.stdata); return h
    def need(self, I):
        req = 0
        def dist(p): return self.pos - p
        def want(p, d):
            nonlocal req
            req = max(req, d - dist(p))
        k = I.kind
        valu_like = k in ('valu', 'trans', 'readlane', 'permlane', 'dot')
        for r in I.rd:
            e = self.w.get(r)
            if e is None: continue
            pk, pp, passes, dst = e
            if isv(r):
                if pk == 'mfma':
                    if k == 'mfma':
                        if r in I.rdA: want(pp, 8 if passes == 4 else 12)
                        if r in I.rdC:
                            if not (I.rdC == dst and I.passes == passes): want(pp, 6 if passes == 4 else 10)
                    else:
                        want(pp, 8 if passes == 4 else 12)
                elif pk in ('valu', 'trans', 'permlane', 'dot'):
                    if pk == 'dot' and k != 'dot': want(pp, 3)
                    if k == 'mfma': want(pp, 2)
                    if k == 'permlane' or I.dpp: want(pp, 2)
                    if k == 'readlane': want(pp, 1)
                    if pk == 'trans' and k != 'trans' and (valu_like or k == 'mfma'): want(pp, 1)
            else:
                if pk in ('valu', 'readlane', 'trans'):
                    if valu_like or k == 'mfma': want(pp, 4 if k == 'readlane' else 2)
                    if k in ('vmem', 'dma', 'store'): want(pp, 5)
                if pk == 'salu' and r == 'm0' and k in ('dma',): want(pp, 1)
        for r in I.wr:
            if isv(r):
                e = self.w.get(r)
                if e is not None and e[0] == 'mfma' and k != 'mfma':
                    want(e[1], 8 if e[2] == 4 else 12)
                if e is not None and e[0] == 'mfma' and k == 'mfma' and not (I.wr == e[3] and I.passes == e[2]):
                    want(e[1], 6 if e[2] == 4 else 10)
                c = self.cread.get(r)
                if c is not None and valu_like: want(c[0], 3 if c[1] == 4 else 7)
                s = self.stdata.get(r)
                if s is not None: want(s, 2 if valu_like else 1)
        return max(req, 0)
    def step(self, I):
        n = I.states()
        p = self.pos + n
        for r in I.wr:
            self.w[r] = (I.kind, p, I.passes, I.wr if I.kind == 'mfma' else None)
        if I.kind == 'mfma':
            for r in I.rdC: self.cread[r] = (p, I.passes)
        if I.kind == 'store':
            for r in I.rdC: self.stdata[r] = p
        self.pos = p
    def pending(self):
        m = 0
        for r, (k, p, passes, dst) in self.w.items():
            d = 0
            if k == 'mfma': d = 8 if passes == 4 else 12
            elif k == 'dot': d = 3
            elif k in ('valu', 'trans', 'permlane', 'readlane'): d = 5 if not isv(r) else 2
            elif k == 'salu' and r == 'm0': d = 1
            m = max(m, d - (self.pos - p))
        for r, (p, passes) in self.cread.items(): m = max(m, (3 if passes == 4 else 7) - (self.pos - p))
        for r, p in self.stdata.items(): m = max(m, 2 - (self.pos - p))
        return max(m, 0)
    def merge(self, other):
        h = HazardState(); h.pos = 1000
        for src in (self, other):
            for r, (k, p, passes, dst) in src.w.items():
                np_ = h.pos - (src.pos - p)
                e = h.w.get(r)
                cand = (k, np_, passes, dst)
                if e is None or self._rank(cand, h.pos) > self._rank(e, h.pos): h.w[r] = cand
            for r, (p, passes) in src.cread.items():
                np_ = h.pos - (src.pos - p)
                if r not in h.cread or np_ + passes > h.cread[r][0] + h.cread[r][1]: h.cread[r] = (np_, passes)
            for r, p in src.stdata.items():
                np_ = h.pos - (src.pos - p)
                if r not in h.stdata or np_ > h.stdata[r]: h.stdata[r] = np_
        return h
    @staticmethod
    def _rank(e, pos):
        k, p, passes, dst = e
        d = 12 if (k == 'mfma' and passes == 8) else 8 if k == 'mfma' else 5
        return d - (pos - p)

class Asm:
    def __init__(self):
        self.items = []
        self.vm = []
        self.lg = []
        self.uid = 0
    def I(self, text, tag=None):
        ins = Ins(text)
        self.items.append(ins)
        if ins.kind in ('vmem', 'dma', 'store'):
            self.vm.append(tag)
        elif ins.kind == 'ds':
            self.lg.append(tag)
        return ins
    def __call__(self, text, tag=None): return self.I(text, tag)
    def many(self, lst):
        for t in lst: self.I(t)
    def label(self, name): self.items.append(('label', name))
    def raw(self, text): self.items.append(('raw', text))
    def comment(self, text): self.items.append(('raw', '; ' + text))
    def newlabel(self, base):
        self.uid += 1
        return '%s_%d' % (base, self.uid)
    def loop_begin(self, name): self.items.append(('loop_begin', name))
    def loop_end(self, name): self.items.append(('loop_end', name))
    def wait_vm(self, tag, extra=''):
        idx = max(i for i, t in enumerate(self.vm) if t == tag or (isinstance(t, tuple) and tag in t))
        n = len(self.vm) - 1 - idx
        assert n <= 63, n
        self.I('s_waitcnt vmcnt(%d)%s' % (n, extra))
        self.vm = self.vm[idx + 1:]
    def wait_vm_opt(self, tag):
        if any(t == tag for t in self.vm): self.wait_vm(tag)
    def wait_vm0(self):
        self.I('s_waitcnt vmcnt(0)'); self.vm = []
    def wait_lg(self, tag):
        idx = max(i for i, t in enumerate(self.lg) if t == tag)
        n = len(self.lg) - 1 - idx
        assert n <= 15, n
        self.I('s_waitcnt lgkmcnt(%d)' % n)
        self.lg = self.lg[idx + 1:]
    def wait_lg0(self):
        self.I('s_waitcnt lgkmcnt(0)'); self.lg = []
    def wait_all(self):
        self.I('s_waitcnt vmcnt(0) lgkmcnt(0)'); self.vm = []; self.lg = []
    def render(self):
        out = []
        st = HazardState()
        items = self.items
        i = 0
        def run(seq, st, out):
            for it in seq:
                if isinstance(it, Ins):
                    n = st.need(it)
                    while n > 0:
                        c = min(n, 16)
                        nop = Ins('s_nop %d' % (c - 1)); out.append(nop); st.step(nop); n -= c
                    out.append(it); st.step(it)
                    if it.op.startswith(('s_cbranch', 's_branch', 's_setpc')):
                        p = st.pending()
                        if p > 0 and not getattr(self, '_inloop', False):
                            pass
                else:
                    kind = it[0]
                    if kind == 'label':
                        p = st.pending()
                        while p > 0:
                            c = min(p, 16)
                            nop = Ins('s_nop %d' % (c - 1)); out.append(nop); st.step(nop); p -= c
                    out.append(it)
            return st
        def pad_branches(seq):
            return seq
        while i < len(items):
            it = items[i]
            if not isinstance(it, Ins) and it[0] == 'loop_begin':
                name = it[1]
                j = i + 1
                while not (not isinstance(items[j], Ins) and items[j][0] == 'loop_end' and items[j][1] == name): j += 1
                body = items[i + 1:j]
                entry = st.copy()
                for _ in range(4):
                    tmp = []
                    end = self._run_body(body, entry.copy(), tmp)
                    new_entry = st.merge(end)
                    entry = new_entry
                tmp = []
                end = self._run_body(body, entry.copy(), tmp)
                out.append(('label', name))
                out += tmp
                st = end
                i = j + 1
                continue
            if isinstance(it, Ins) and it.op.startswith(('s_cbranch', 's_branch')):
                p = st.pending()
                while p > 0:
                    c = min(p, 16)
                    nop = Ins('s_nop %d' % (c - 1)); out.append(nop); st.step(nop); p -= c
            st = run([it], st, out)
            i += 1
        lines = []
        for it in out:
            if isinstance(it, Ins): lines.append('  ' + it.text)
            elif it[0] == 'label': lines.append(it[1] + ':')
            elif it[0] == 'raw': lines.append(it[1])
        return '\n'.join(lines) + '\n'
    def _run_body(self, body, st, out):
        for it in body:
            if isinstance(it, Ins):
                n = st.need(it)
                while n > 0:
                    c = min(n, 16)
                    nop = Ins('s_nop %d' % (c - 1)); out.append(nop); st.step(nop); n -= c
                out.append(it); st.step(it)
            else:
                assert it[0] == 'raw', 'no labels inside hot loops: %r' % (it,)
                out.append(it)
        return st
```

```python
import sys, os
sys.path.insert(0, os.path.dirname(os.path.abspath(__file__)))
from asmlib import Asm
import layout as L

KNAME = 'interleave_layers__grouped_kv_mqa__dense_activation_gelu__prompt_kernel'
STOP = int(os.environ.get('STOP', '99'))

S_WS, S_X, S_OUT, S_DBG, S_TMP = 's[8:11]', 's[12:15]', 's[16:19]', 's[20:23]', 's[24:27]'
sW, sC, sJ, sROLE, sP = 's28', 's29', 's30', 's31', 's32'
P_X, P_WQ, P_WK, P_WV, P_WO, P_BX, P_W1, P_B1, P_W2, P_B2, P_OUT, P_DBG, P_WS = [64 + 2 * i for i in range(13)]
vTID, vLANE, vL16, vROW, vG = 'v0', 'v1', 'v2', 'v3', 'v4'
RES = 246
SPIN = 50000

def srd(a, dst, ptr, size):
    a('s_mov_b32 s%d, s%d' % (dst, ptr))
    a('s_and_b32 s%d, s%d, 0xffff' % (dst + 1, ptr + 1))
    a('s_mov_b32 s%d, 0x%x' % (dst + 2, size))
    a('s_mov_b32 s%d, 0x20000' % (dst + 3))

def setup(a):
    a('s_cmp_ge_u32 s2, 256')
    a('s_cbranch_scc1 L_END')
    a('s_load_dwordx16 s[64:79], s[0:1], 0')
    a('s_load_dwordx8 s[80:87], s[0:1], 64')
    a('s_load_dwordx2 s[88:89], s[0:1], 96')
    a('v_lshrrev_b32 v5, 6, v0')
    a('v_and_b32 v1, 63, v0')
    a('v_readfirstlane_b32 %s, v5' % sW)
    a('v_lshlrev_b32 v2, 4, v1')
    a('v_and_b32 v3, 15, v1')
    a('v_lshrrev_b32 v4, 4, v1')
    a('s_lshr_b32 %s, s2, 3' % sJ)
    a('s_and_b32 %s, %s, 7' % (sJ, sJ))
    a('s_and_b32 s3, s2, 7')
    a('s_lshl_b32 s3, s3, 2')
    a('s_lshr_b32 %s, s2, 6' % sC)
    a('s_add_u32 %s, %s, s3' % (sC, sC))
    a('s_lshl_b32 %s, %s, 3' % (sROLE, sC))
    a('s_add_u32 %s, %s, %s' % (sROLE, sROLE, sJ))
    a('s_waitcnt lgkmcnt(0)')
    srd(a, 8, P_WS, L.WS_USED)
    srd(a, 12, P_X, L.S * L.D * 2)
    srd(a, 16, P_OUT, L.S * L.D * 2)
    srd(a, 20, P_DBG, 256)
    a('s_getreg_b32 s35, hwreg(HW_REG_XCC_ID)')
    a('s_and_b32 s35, s35, 15'); a('s_or_b32 s35, s35, 0x100')
    a('s_mov_b32 s34, 0')

def gather(a, F, voff, sbase, const, RS):
    for jj in range(8):
        a('s_add_u32 s40, %s, %d' % (sbase, const + jj * RS))
        a('buffer_load_short_d16%s v%d, %s, %s, s40 offen' % ('_hi' if jj & 1 else '', F + jj // 2 + (4 if jj & 1 else 0), voff, S_TMP))

def gather_merge(a, F):
    for r in range(4):
        a('v_and_b32 v%d, 0xffff, v%d' % (F + r, F + r))
        a('v_and_b32 v%d, 0xffff0000, v%d' % (F + 4 + r, F + 4 + r))
        a('v_or_b32 v%d, v%d, v%d' % (F + r, F + r, F + 4 + r))

def colperm_v(a, dst, sT, tmp):
    a('s_lshr_b32 s41, %s, 1' % sT)
    a('s_lshl_b32 s41, s41, 5')
    a('s_and_b32 s42, %s, 1' % sT)
    a('s_lshl_b32 s42, s42, 2')
    a('s_add_u32 s41, s41, s42')
    a('v_lshrrev_b32 %s, 2, %s' % (tmp, vROW))
    a('v_lshlrev_b32 %s, 3, %s' % (tmp, tmp))
    a('v_and_b32 %s, 3, %s' % (dst, vROW))
    a('v_add_u32 %s, %s, %s' % (dst, dst, tmp))
    a('v_add_u32 %s, s41, %s' % (dst, dst))
    a('v_lshlrev_b32 %s, 1, %s' % (dst, dst))

def ones(a, r):
    for i in range(4): a('v_mov_b32 v%d, 0x3f803f80' % (r + i))

def prep_task16(a, name, ptr, size, RS, nfr, dest_fn, cs_dest):
    srd(a, 24, ptr, size)
    colperm = name not in ('wkv',)
    if colperm:
        colperm_v(a, 'v8', 's43', 'v9')
    else:
        a('s_lshl_b32 s41, s43, 4')
        a('v_add_u32 v8, s41, %s' % vROW)
        a('v_cmp_gt_u32 vcc, 20, v8')
        a('v_lshlrev_b32 v8, 1, v8')
        a('v_mov_b32 v9, 0x40000000')
        a('v_cndmask_b32 v8, v9, v8, vcc')
    a('v_mul_u32_u24 v9, %d, %s' % (8 * RS, vG))
    a('v_add_u32 v8, v8, v9')
    a('s_mul_i32 s46, s44, %d' % (32 * RS))
    for f in range(nfr):
        gather(a, 96 + 8 * f, 'v8', 's46', f * 32 * RS, RS)
    stride = dest_fn(a)
    if cs_dest is not None:
        ones(a, 12)
        for r in range(4): a('v_mov_b32 v%d, 0' % (64 + r))
    a.wait_vm0()
    for f in range(nfr): gather_merge(a, 96 + 8 * f)
    for f in range(nfr):
        a('s_add_u32 s40, s45, %d' % (f * stride))
        a('buffer_store_dwordx4 v[%d:%d], %s, %s, s40 offen sc1' % (96 + 8 * f, 99 + 8 * f, vL16, S_WS))
        if cs_dest is not None:
            a('v_mfma_f32_16x16x32_bf16 v[64:67], v[%d:%d], v[12:15], v[64:67]' % (96 + 8 * f, 99 + 8 * f))
    if cs_dest is not None:
        cs_dest(a)
        a('v_lshlrev_b32 v9, 4, %s' % vG)
        a('v_cmp_eq_u32 vcc, 0, %s' % vROW)
        a('s_and_saveexec_b64 s[46:47], vcc')
        a('buffer_store_dwordx4 v[64:67], v9, %s, s45 offen sc1' % S_WS)
        a('s_mov_b64 exec, s[46:47]')

def prep(a):
    a.comment('---- prep: re-tile weights')
    a('s_lshl_b32 s33, s2, 2')
    a('s_add_u32 s33, s33, %s' % sW)
    lab = {n: a.newlabel('PREP_' + n) for n in ('w2', 'wo', 'wq', 'wkv', 'misc', 'done')}
    a('s_cmp_ge_u32 s33, 384'); a('s_cbranch_scc1 %s' % lab['w2'])
    a('s_lshr_b32 s43, s33, 2'); a('s_and_b32 s47, s33, 3'); a('s_mul_i32 s44, s47, 5')
    def d1(a):
        a('s_mul_i32 s45, s43, 43'); a('s_lshr_b32 s45, s45, 9')
        a('s_mul_i32 s48, s45, 12'); a('s_sub_u32 s48, s43, s48')
        a('s_lshr_b32 s50, s48, 1'); a('s_and_b32 s51, s48, 1'); a('s_sub_u32 s52, s48, 8')
        a('s_cmp_lt_u32 s48, 8'); a('s_cselect_b32 s50, s50, s52'); a('s_cselect_b32 s51, s51, 2')
        a('s_lshl_b32 s45, s45, 2'); a('s_add_u32 s45, s45, s50')
        a('s_mul_i32 s45, s45, 20'); a('s_add_u32 s45, s45, s44'); a('s_mul_i32 s45, s45, 3'); a('s_add_u32 s45, s45, s51')
        a('s_lshl_b32 s45, s45, 10'); a('s_add_u32 s45, s45, %d' % L.W1_T)
        return 3 * 1024
    def c1(a):
        a('s_and_b32 s47, s33, 3'); a('s_mul_i32 s45, s47, 96'); a('s_add_u32 s45, s45, s43'); a('s_lshl_b32 s45, s45, 6'); a('s_add_u32 s45, s45, %d' % L.CS1)
    prep_task16(a, 'w1', P_W1, L.D * L.F * 2, L.F * 2, 5, d1, c1)
    a('s_branch %s' % lab['done'])
    a.label(lab['w2'])
    a('s_cmp_ge_u32 s33, 704'); a('s_cbranch_scc1 %s' % lab['wo'])
    a('s_sub_u32 s47, s33, 384'); a('s_lshr_b32 s43, s47, 3'); a('s_and_b32 s47, s47, 7'); a('s_mul_i32 s44, s47, 6')
    def d5(base, ns):
        def f(a):
            a('s_lshr_b32 s45, s43, 2'); a('s_and_b32 s48, s43, 3'); a('s_sub_u32 s50, s43, 32')
            a('s_cmp_lt_u32 s43, 32'); a('s_cselect_b32 s45, s45, s50'); a('s_cselect_b32 s48, s48, 4')
            a('s_mul_i32 s45, s45, %d' % ns); a('s_add_u32 s45, s45, s44'); a('s_mul_i32 s45, s45, 5'); a('s_add_u32 s45, s45, s48')
            a('s_lshl_b32 s45, s45, 10'); a('s_add_u32 s45, s45, %d' % base)
            return 5 * 1024
        return f
    prep_task16(a, 'w2', P_W2, L.F * L.D * 2, L.D * 2, 6, d5(L.W2_T, 48), None)
    a('s_branch %s' % lab['done'])
    a.label(lab['wo'])
    a('s_cmp_ge_u32 s33, 864'); a('s_cbranch_scc1 %s' % lab['wq'])
    a('s_sub_u32 s47, s33, 704'); a('s_lshr_b32 s43, s47, 2'); a('s_and_b32 s47, s47, 3'); a('s_mul_i32 s44, s47, 5')
    prep_task16(a, 'wo', P_WO, L.D * L.D * 2, L.D * 2, 5, d5(L.WO_T, 20), None)
    a('s_branch %s' % lab['done'])
    a.label(lab['wq'])
    a('s_cmp_ge_u32 s33, 992'); a('s_cbranch_scc1 %s' % lab['wkv'])
    a('s_sub_u32 s47, s33, 864'); a('s_lshr_b32 s43, s47, 2'); a('s_and_b32 s47, s47, 3'); a('s_mul_i32 s44, s47, 10')
    srd(a, 24, P_WQ, L.D * L.D * 2)
    a('v_and_b32 v8, 31, %s' % vLANE)
    a('v_cmp_gt_u32 vcc, 20, v8')
    a('s_mul_i32 s41, s43, 20')
    a('v_add_u32 v8, s41, v8')
    a('v_lshlrev_b32 v8, 1, v8')
    a('v_mov_b32 v9, 0x40000000')
    a('v_cndmask_b32 v8, v9, v8, vcc')
    a('v_lshrrev_b32 v9, 5, %s' % vLANE)
    a('v_mul_u32_u24 v9, %d, v9' % (8 * 1280))
    a('v_add_u32 v8, v8, v9')
    a('s_mul_i32 s46, s44, %d' % (16 * 1280))
    for f in range(10):
        gather(a, 96 + 8 * f, 'v8', 's46', f * 16 * 1280, 1280)
    a('s_mul_i32 s45, s43, 40'); a('s_add_u32 s45, s45, s44'); a('s_lshl_b32 s45, s45, 10'); a('s_add_u32 s45, s45, %d' % L.WQ_T)
    ones(a, 12)
    for r in range(16): a('v_mov_b32 v%d, 0' % (64 + r))
    a.wait_vm0()
    for f in range(10): gather_merge(a, 96 + 8 * f)
    for f in range(10):
        a('s_add_u32 s40, s45, %d' % (f * 1024))
        a('buffer_store_dwordx4 v[%d:%d], %s, %s, s40 offen sc1' % (96 + 8 * f, 99 + 8 * f, vL16, S_WS))
        a('v_mfma_f32_32x32x16_bf16 v[64:79], v[%d:%d], v[12:15], v[64:79]' % (96 + 8 * f, 99 + 8 * f))
    a('s_and_b32 s47, s33, 3'); a('s_lshl_b32 s45, s47, 5'); a('s_add_u32 s45, s45, s43'); a('s_lshl_b32 s45, s45, 7'); a('s_add_u32 s45, s45, %d' % L.CSQ)
    a('v_lshrrev_b32 v9, 5, %s' % vLANE); a('v_lshlrev_b32 v9, 4, v9')
    a('v_and_b32 v10, 31, %s' % vLANE); a('v_cmp_eq_u32 vcc, 0, v10')
    a('s_and_saveexec_b64 s[46:47], vcc')
    for q in range(4):
        a('buffer_store_dwordx4 v[%d:%d], v9, %s, s45 offen offset:%d sc1' % (64 + 4 * q, 67 + 4 * q, S_WS, 32 * q))
    a('s_mov_b64 exec, s[46:47]')
    a('s_branch %s' % lab['done'])
    a.label(lab['wkv'])
    a('s_cmp_ge_u32 s33, 1008'); a('s_cbranch_scc1 %s' % lab['misc'])
    a('s_sub_u32 s47, s33, 992'); a('s_lshr_b32 s49, s47, 3')
    a('s_lshr_b32 s43, s47, 2'); a('s_and_b32 s43, s43, 1'); a('s_and_b32 s47, s47, 3'); a('s_mul_i32 s44, s47, 5')
    a('s_cmp_eq_u32 s49, 0')
    a('s_cselect_b32 s50, s%d, s%d' % (P_WK, P_WV)); a('s_cselect_b32 s51, s%d, s%d' % (P_WK + 1, P_WV + 1))
    def dkv(a):
        a('s_and_b32 s47, s33, 3'); a('s_lshl_b32 s45, s49, 2'); a('s_add_u32 s45, s45, s47'); a('s_mul_i32 s45, s45, 10'); a('s_add_u32 s45, s45, s43')
        a('s_lshl_b32 s45, s45, 10'); a('s_add_u32 s45, s45, %d' % L.WKV_T)
        return 2 * 1024
    def ckv(a):
        a('s_and_b32 s47, s33, 3'); a('s_lshl_b32 s45, s47, 1'); a('s_add_u32 s45, s45, s49'); a('s_lshl_b32 s45, s45, 1'); a('s_add_u32 s45, s45, s43')
        a('s_lshl_b32 s45, s45, 6'); a('s_add_u32 s45, s45, %d' % L.CSKV)
    prep_task16(a, 'wkv', 50, L.D * 20 * 2, 40, 5, dkv, ckv)
    a('s_branch %s' % lab['done'])
    a.label(lab['misc'])
    a('s_sub_u32 s47, s33, 1008')
    lb2 = a.newlabel('PREP_b2')
    a('s_cmp_ge_u32 s47, 8'); a('s_cbranch_scc1 %s' % lb2)
    def bias(ptr, n, dest, first, iters):
        srd(a, 24, ptr, n * 2)
        for it in range(iters):
            a('s_mul_i32 s41, %s, %d' % (first, iters)); a('s_add_u32 s41, s41, %d' % it); a('s_lshl_b32 s41, s41, 6')
            a('v_add_u32 v8, s41, %s' % vLANE)
            a('v_lshrrev_b32 v9, 5, v8'); a('v_lshlrev_b32 v9, 5, v9')
            a('v_lshrrev_b32 v10, 4, v8'); a('v_and_b32 v10, 1, v10'); a('v_lshlrev_b32 v10, 2, v10'); a('v_add_u32 v9, v9, v10')
            a('v_lshrrev_b32 v10, 2, %s' % vROW); a('v_lshlrev_b32 v10, 3, v10'); a('v_add_u32 v9, v9, v10')
            a('v_and_b32 v10, 3, %s' % vROW); a('v_add_u32 v9, v9, v10'); a('v_lshlrev_b32 v9, 1, v9')
            a('buffer_load_ushort v11, v9, %s, 0 offen' % S_TMP)
            a('v_lshlrev_b32 v8, 2, v8')
            a('v_cmp_gt_u32 vcc, %d, v8' % (n * 4))
            a.wait_vm0()
            a('v_lshlrev_b32 v11, 16, v11')
            a('s_and_saveexec_b64 s[50:51], vcc')
            a('s_mov_b32 s45, %d' % dest)
            a('buffer_store_dword v11, v8, %s, s45 offen sc1' % S_WS)
            a('s_mov_b64 exec, s[50:51]')
    bias(P_B1, L.F, L.B1P, 's47', 3)
    a('s_branch %s' % lab['done'])
    a.label(lb2)
    a('s_sub_u32 s47, s47, 8')
    bias(P_B2, L.D, L.B2P, 's47', 2)
    a.label(lab['done'])
    a.vm = []

def unpack_res(a, dst, src_is_agpr=True):
    for t in range(10):
        a('v_accvgpr_read_b32 v%d, a%d' % (dst + 2 * t + 1, RES + t))
    for t in range(10):
        a('v_lshlrev_b32 v%d, 16, v%d' % (dst + 2 * t, dst + 2 * t + 1))
        a('v_and_b32 v%d, 0xffff0000, v%d' % (dst + 2 * t + 1, dst + 2 * t + 1))

def stats_regs(a, X, S0):
    a('v_pk_mul_f32 v[%d:%d], v[%d:%d], v[%d:%d]' % (S0 + 2, S0 + 3, X, X + 1, X, X + 1))
    a('v_pk_add_f32 v[%d:%d], v[%d:%d], v[%d:%d]' % (S0 + 4, S0 + 5, X, X + 1, X + 2, X + 3))
    a('v_pk_fma_f32 v[%d:%d], v[%d:%d], v[%d:%d], v[%d:%d]' % (S0 + 2, S0 + 3, X + 2, X + 3, X + 2, X + 3, S0 + 2, S0 + 3))
    for t in range(2, 10):
        a('v_pk_add_f32 v[%d:%d], v[%d:%d], v[%d:%d]' % (S0 + 4, S0 + 5, S0 + 4, S0 + 5, X + 2 * t, X + 2 * t + 1))
        a('v_pk_fma_f32 v[%d:%d], v[%d:%d], v[%d:%d], v[%d:%d]' % (S0 + 2, S0 + 3, X + 2 * t, X + 2 * t + 1, X + 2 * t, X + 2 * t + 1, S0 + 2, S0 + 3))
    a('v_add_f32 v%d, v%d, v%d' % (S0, S0 + 4, S0 + 5))
    a('v_add_f32 v%d, v%d, v%d' % (S0 + 1, S0 + 2, S0 + 3))

def store_stats(a, S0, base_sreg_or_const, defer=False):
    a('s_lshl_b32 s40, %s, 2' % sC); a('s_add_u32 s40, s40, %s' % sW); a('s_lshl_b32 s40, s40, 3'); a('s_add_u32 s40, s40, %s' % sJ)
    a('s_lshl_b32 s40, s40, 9'); a('s_add_u32 s40, s40, %s' % base_sreg_or_const)
    a('v_lshlrev_b32 v%d, 3, %s' % (S0 + 2, vLANE))
    if defer: return 'buffer_store_dwordx2 v[%d:%d], v%d, %s, s40 offen' % (S0, S0 + 1, S0 + 2, S_WS)
    a('buffer_store_dwordx2 v[%d:%d], v%d, %s, s40 offen sc1' % (S0, S0 + 1, S0 + 2, S_WS), tag='st')

def rowmajor_voff(a, dst, tmp):
    a('s_lshl_b32 s40, %s, 6' % sC); a('s_lshl_b32 s41, %s, 4' % sW); a('s_add_u32 s40, s40, s41')
    a('v_add_u32 %s, s40, %s' % (dst, vROW))
    a('v_mul_u32_u24 %s, 1280, %s' % (dst, dst))
    a('v_lshlrev_b32 %s, 4, %s' % (tmp, vG))
    a('v_add_u32 %s, %s, %s' % (dst, dst, tmp))

def tile_col_bytes(T):
    return (32 * (T >> 1) + 4 * (T & 1)) * 2

def res_single_off(a, dst, step):
    a('s_lshr_b32 %s, %s, 1' % (dst, sJ)); a('s_add_u32 %s, %s, 16' % (dst, dst)); a('s_mul_i32 %s, %s, %d' % (dst, dst, step))
    a('s_and_b32 s41, %s, 1' % sJ); a('s_lshl_b32 s41, s41, 3'); a('s_add_u32 %s, %s, s41' % (dst, dst))

def load_res0(a):
    a.comment('---- residual tile x0 and its row statistics')
    rowmajor_voff(a, 'v8', 'v9')
    a('s_lshl_b32 s44, %s, 7' % sJ)
    a('buffer_load_dwordx4 v[16:19], v8, %s, s44 offen' % S_X, tag='res')
    a('buffer_load_dwordx4 v[20:23], v8, %s, s44 offen offset:64' % S_X, tag='res')
    res_single_off(a, 's44', 64)
    a('buffer_load_dwordx2 v[24:25], v8, %s, s44 offen' % S_X, tag='res')
    a.wait_vm('res')
    for t in range(10): a('v_accvgpr_write_b32 a%d, v%d' % (RES + t, 16 + t))
    unpack_res(a, 32)
    stats_regs(a, 32, 56)
    store_stats(a, 56, str(L.ST0))

def zero_flags(a):
    lab = a.newlabel('ZF')
    a('s_cmp_eq_u32 %s, 0' % sW); a('s_cbranch_scc0 %s' % lab)
    a('v_mov_b32 v8, 0')
    a('s_lshl_b32 s40, %s, 7' % sC); a('s_lshl_b32 s41, %s, 2' % sJ); a('s_add_u32 s40, s40, s41'); a('s_add_u32 s40, s40, %d' % L.FLAGC)
    a('s_mov_b64 exec, 1')
    a('buffer_store_dword v8, v8, %s, s40 offen sc1' % S_WS)
    a('s_lshl_b32 s40, %s, 2' % sROLE); a('s_add_u32 s40, s40, %d' % L.FLAGKV)
    a('buffer_store_dword v8, v8, %s, s40 offen sc1' % S_WS)
    a('s_lshl_b32 s40, %s, 2' % sROLE); a('s_add_u32 s40, s40, %d' % L.XCCW)
    a('v_mov_b32 v9, s35')
    a('buffer_store_dword v9, v8, %s, s40 offen sc1' % S_WS)
    a('s_mov_b64 exec, -1')
    a.label(lab)

def spin(a, name, load, notready):
    l0, l1 = a.newlabel(name), a.newlabel(name + '_done')
    a('s_mov_b32 s42, %d' % SPIN)
    a.label(l0)
    load()
    a('s_waitcnt vmcnt(0)')
    notready()
    a('s_cmp_eq_u64 vcc, 0'); a('s_cbranch_scc1 %s' % l1)
    a('s_sleep 1')
    a('s_sub_u32 s42, s42, 1'); a('s_cmp_lg_u32 s42, 0'); a('s_cbranch_scc1 %s' % l0)
    a.label(l1)

def global_barrier_dbg(a):
    a.wait_all()
    a('s_barrier')
    lab = a.newlabel('GB')
    a('s_cmp_eq_u32 %s, 0' % sW); a('s_cbranch_scc0 %s' % lab)
    a('s_and_b32 s40, %s, 7' % sROLE); a('s_lshl_b32 s40, s40, 5')
    a('v_mov_b32 v8, s40'); a('v_mov_b32 v9, 1')
    a('s_mov_b64 exec, 1')
    a('buffer_atomic_add v9, v8, %s, 0 offen' % S_DBG)
    a('s_mov_b64 exec, 0xff')
    a('v_lshlrev_b32 v8, 5, %s' % vLANE)
    spin(a, 'GBP', lambda: a('buffer_load_dword v9, v8, %s, 0 offen sc1' % S_DBG), lambda: a('v_cmp_gt_u32 vcc, 32, v9'))
    a('s_mov_b64 exec, -1')
    a.label(lab)
    a('s_barrier')
    a.vm = []

def signal_cluster(a, val_code):
    a.wait_vm0()
    a('s_barrier')
    lab = a.newlabel('SIG')
    a('s_cmp_eq_u32 %s, 0' % sW); a('s_cbranch_scc0 %s' % lab)
    val_code()
    a('s_lshl_b32 s40, %s, 7' % sC); a('s_lshl_b32 s41, %s, 2' % sJ); a('s_add_u32 s40, s40, s41'); a('s_add_u32 s40, s40, %d' % L.FLAGC)
    a('v_mov_b32 v8, 0'); a('v_mov_b32 v9, s43')
    a('s_mov_b64 exec, 1')
    a('buffer_store_dword v9, v8, %s, s40 offen sc1' % S_WS)
    a('s_mov_b64 exec, -1')
    a.label(lab)

def wait_cluster(a, val_code):
    lab = a.newlabel('WC')
    a('s_cmp_eq_u32 %s, 0' % sW); a('s_cbranch_scc0 %s' % lab)
    val_code()
    a('s_lshl_b32 s40, %s, 7' % sC); a('s_add_u32 s40, s40, %d' % L.FLAGC)
    a('s_mov_b64 exec, 0xff')
    a('v_lshlrev_b32 v8, 2, %s' % vLANE)
    spin(a, 'WCP', lambda: a('buffer_load_dword v9, v8, %s, s40 offen sc1' % S_WS), lambda: a('v_cmp_gt_u32 vcc, s43, v9'))
    a('s_mov_b64 exec, -1')
    a.label(lab)
    a('s_barrier')
    a.vm = []

def dump(a, reg, slot):
    a('s_lshl_b32 s60, s2, 10'); a('s_add_u32 s60, s60, %d' % (L.DBGW + slot * 256 * 1024))
    a('v_lshlrev_b32 v255, 2, v0')
    a('buffer_store_dword v%d, v255, %s, s60 offen' % (reg, S_WS))
    a.vm.pop()

PROF = int(os.environ.get('PROF', '0'))
_nst = [0]
STAMP_NAMES = []
def stamp(a, name):
    if not PROF: return
    idx = _nst[0]; _nst[0] += 1; STAMP_NAMES.append(name)
    lab = a.newlabel('ST')
    a('s_cmp_eq_u32 %s, 0' % sW); a('s_cbranch_scc0 %s' % lab)
    a('s_memtime s[90:91]'); a('s_memrealtime s[92:93]'); a('s_waitcnt lgkmcnt(0)')
    a('s_lshl_b32 s94, s2, 10'); a('s_lshl_b32 s95, %s, 9' % sP); a('s_add_u32 s94, s94, s95'); a('s_add_u32 s94, s94, %d' % (L.DBGW + idx * 8))
    a('v_mov_b32 v252, s90'); a('v_mov_b32 v253, s92'); a('v_mov_b32 v254, 0')
    a('s_mov_b64 s[96:97], exec'); a('s_mov_b64 exec, 1')
    a('buffer_store_dwordx2 v[252:253], v254, %s, s94 offen' % S_WS)
    a.vm.pop()
    a('s_mov_b64 exec, s[96:97]')
    a('s_waitcnt vmcnt(0)') if False else None
    a.label(lab)

def phase_val(k):
    def f(a=None): pass
    return f

def stop_here(a, n):
    if STOP == n:
        a.wait_all()
        a('s_endpgm')


def build():
    sys.modules.setdefault('gen1', sys.modules[__name__])
    from phases1 import qkv, attention, wo, ffn1, ffn2
    a = Asm()
    setup(a)
    a('s_mov_b32 %s, 0' % sP)
    stamp(a, 'start')
    zero_flags(a)
    load_res0(a)
    prep(a)
    stamp(a, 'prep_done')
    global_barrier_dbg(a)
    stamp(a, 'gbar_done')
    stop_here(a, 0)
    a('s_mov_b32 %s, 0' % sP)
    a.label('L_LAYER')
    qkv(a); stop_here(a, 1); stamp(a, 'qkv_end')
    attention(a); stop_here(a, 2); stamp(a, 'att_end')
    wo(a); stop_here(a, 3); stamp(a, 'wo_end')
    ffn1(a); stop_here(a, 4); stamp(a, 'ffn1_end')
    ffn2(a); stop_here(a, 5); stamp(a, 'ffn2_end')
    a('s_add_u32 %s, %s, 1' % (sP, sP))
    a('s_cmp_lt_u32 %s, 2' % sP)
    a('s_cbranch_scc1 L_LAYER')
    a.label('L_END')
    a('s_endpgm')
    return a

HEADER = open(os.path.join(os.path.dirname(os.path.abspath(__file__)), 'header.txt')).read()
def emit(lds):
    a = build()
    body = a.render()
    s = HEADER + '; @launch grid=(256,1,1) block=(256,1,1) lds=%d\n' % lds
    s += '.amdgcn_target "amdgcn-amd-amdhsa--gfx950"\n.text\n.globl %s\n.p2align 8\n.type %s,@function\n%s:\n' % (KNAME, KNAME, KNAME)
    s += body
    s += '.section .rodata,"a"\n.p2align 6\n.amdhsa_kernel %s\n' % KNAME
    s += '  .amdhsa_next_free_vgpr 512\n  .amdhsa_next_free_sgpr 102\n  .amdhsa_accum_offset 256\n  .amdhsa_group_segment_fixed_size 0\n  .amdhsa_kernarg_size 104\n'
    s += '  .amdhsa_user_sgpr_count 2\n  .amdhsa_user_sgpr_kernarg_segment_ptr 1\n  .amdhsa_system_sgpr_workgroup_id_x 1\n.end_amdhsa_kernel\n'
    return s
if __name__ == '__main__':
    out = sys.argv[1] if len(sys.argv) > 1 else 'k1.s'
    open(out, 'w').write(emit(163840))
    if PROF: open(out + '.stamps', 'w').write('\n'.join(STAMP_NAMES))
```

```python
S, D, H, DH, F = 2048, 640, 32, 20, 1536
KB = 1024
off = 0
def alloc(n, align=4096):
    global off
    off = (off + align - 1) // align * align
    o = off; off += n
    return o
FLAGC  = alloc(32 * 128)
FLAGKV = alloc(256 * 4)
XCCW   = alloc(256 * 4)
PREPF  = alloc(256 * 4)
CSQI   = alloc(32 * 3 * KB)
CSKI   = alloc(2 * 2 * KB)
WO_T   = alloc(800 * KB)
W2_T   = alloc(1920 * KB)
W1_T   = alloc(1920 * KB)
WQ_T   = alloc(1280 * KB)
WKV_T  = alloc(80 * KB)
CS1    = alloc(4 * 96 * 64)
B1P    = alloc(96 * 64)
B2P    = alloc(40 * 64)
CSQ    = alloc(4 * 32 * 128)
CSKV   = alloc(4 * 2 * 128)
ACT = 128 * 20 * KB
O_   = [alloc(ACT), alloc(ACT)]
X1_  = [alloc(ACT), alloc(ACT)]
X2_  = [alloc(ACT)]
H_   = [alloc(128 * 48 * KB), alloc(128 * 48 * KB)]
STB = 128 * 8 * 512
ST0  = alloc(STB)
ST1_ = [alloc(STB), alloc(STB)]
ST2_ = [alloc(STB)]
KVREC = 3072
KV_  = [alloc(64 * KVREC), alloc(64 * KVREC)]
KN_  = [alloc(128 * 4), alloc(128 * 4)]
DBGW = alloc(16 * 256 * 1024)
WS_USED = off
KV_K1, KV_V0, KV_V1, KV_K2 = 0, 1024, 1696, 2368
def col_perm(T, i):
    return 32 * (T >> 1) + 8 * (i >> 2) + 4 * (T & 1) + (i & 3)
def tile_r(j, t):
    return 4 * j + t if t < 4 else 32 + j
def tile_f(j, w, t):
    return 12 * j + (2 * w + t if t < 2 else 8 + w)
if __name__ == '__main__':
    for k, v in list(globals().items()):
        if k.isupper() or k.endswith('_'): print(k, v if not isinstance(v, int) else hex(v))
```

```python
import layout as L
import math

S_WS, S_X, S_OUT, S_DBG, S_TMP = 's[8:11]', 's[12:15]', 's[16:19]', 's[20:23]', 's[24:27]'
sW, sC, sJ, sROLE, sP = 's28', 's29', 's30', 's31', 's32'
vTID, vLANE, vL16, vROW, vG = 'v0', 'v1', 'v2', 'v3', 'v4'
RES = 246
LDS_STATS = 81920
LDS_RED = 82432
QSCALE = (20.0 ** -0.5) * math.log2(math.e)
FAST_T2 = 64.0 * 64.0
G1 = -2.0 * math.sqrt(2.0 / math.pi) * math.log2(math.e)
G2 = G1 * 0.044715

import struct
def f2b(x): return '0x%08x' % struct.unpack('<I', struct.pack('<f', x))[0]

def helpers():
    import gen1 as G
    return G

def vr(a, n=1): return 'v%d' % a if n == 1 else 'v[%d:%d]' % (a, a + n - 1)
def ar(a, n=1): return 'a%d' % a if n == 1 else 'a[%d:%d]' % (a, a + n - 1)

def sel_layer(a, dst, v0, v1):
    a('s_cmp_eq_u32 %s, 0' % sP)
    a('s_cselect_b32 %s, %d, %d' % (dst, v0, v1) if (v0 <= 64 or v1 <= 64) else 's_mov_b32 %s, %d' % (dst, v0))
    if not (v0 <= 64 or v1 <= 64):
        a('s_cselect_b32 %s, %s, %d' % (dst, dst, v1))

def flagval(k):
    def f(a):
        a('s_lshl_b32 s43, %s, 3' % sP); a('s_add_u32 s43, s43, %d' % k)
    return f

def xsum_g(a, r, tmp):
    a('v_mov_b32 v%d, v%d' % (tmp, r))
    a('v_permlane16_swap_b32 v%d, v%d' % (r, tmp))
    a('v_add_f32 v%d, v%d, v%d' % (r, r, tmp))
    a('v_mov_b32 v%d, v%d' % (tmp, r))
    a('v_permlane32_swap_b32 v%d, v%d' % (r, tmp))
    a('v_add_f32 v%d, v%d, v%d' % (r, r, tmp))

def max_row16(a, r):
    for sh in (8, 4, 2, 1):
        a('v_max_f32_dpp v%d, v%d, v%d row_ror:%d row_mask:0xf bank_mask:0xf' % (r, r, r, sh))

def max_wave(a, r, tmp):
    max_row16(a, r)
    a('v_mov_b32 v%d, v%d' % (tmp, r))
    a('v_permlane16_swap_b32 v%d, v%d' % (r, tmp))
    a('v_max_f32 v%d, v%d, v%d' % (r, r, tmp))
    a('v_mov_b32 v%d, v%d' % (tmp, r))
    a('v_permlane32_swap_b32 v%d, v%d' % (r, tmp))
    a('v_max_f32 v%d, v%d, v%d' % (r, r, tmp))

def row_stats_issue(a, sbase, R):
    a('s_lshl_b32 s40, %s, 2' % sC); a('s_add_u32 s40, s40, %s' % sW); a('s_lshl_b32 s40, s40, 12'); a('s_add_u32 s40, s40, %s' % sbase)
    a('v_lshlrev_b32 v%d, 3, %s' % (R + 16, vLANE))
    for m in range(8):
        a('buffer_load_dwordx2 v[%d:%d], v%d, %s, s40 offen offset:%d sc1' % (R + 2 * m, R + 2 * m + 1, R + 16, S_WS, 512 * m), tag='stats')

def row_stats_finish(a, R):
    a.wait_vm('stats')
    for m in range(1, 8):
        a('v_pk_add_f32 v[%d:%d], v[%d:%d], v[%d:%d]' % (R, R + 1, R, R + 1, R + 2 * m, R + 2 * m + 1))
    xsum_g(a, R, R + 2); xsum_g(a, R + 1, R + 3)
    a('v_mul_f32 v%d, %s, v%d' % (R, f2b(1.0 / 640), R))
    a('v_mul_f32 v%d, %s, v%d' % (R + 1, f2b(1.0 / 640), R + 1))
    a('v_fma_f32 v%d, -v%d, v%d, v%d' % (R + 1, R, R, R + 1))
    a('v_max_f32 v%d, 0, v%d' % (R + 1, R + 1))
    a('v_add_f32 v%d, %s, v%d' % (R + 1, f2b(1e-5), R + 1))
    a('v_rsq_f32 v%d, v%d' % (R + 2, R + 1))
    a('v_mul_f32 v%d, v%d, v%d' % (R + 3, R, R + 2))
    a('v_sub_f32 v%d, 0, v%d' % (R + 3, R + 3))
    import os
    if os.environ.get('DBG') == 'stats':
        G = helpers()
        for i, r in enumerate((R, R + 1, R + 2, R + 3)): G.dump(a, r, i)
    a('s_lshl_b32 s40, %s, 7' % sW); a('s_add_u32 s40, s40, %d' % LDS_STATS)
    a('v_lshlrev_b32 v%d, 3, %s' % (R + 4, vROW)); a('v_add_u32 v%d, s40, v%d' % (R + 4, R + 4))
    a('s_mov_b64 exec, 0xffff')
    a('ds_write_b64 v%d, v[%d:%d]' % (R + 4, R + 2, R + 3))
    a('s_mov_b64 exec, -1')

def dma(a, voff, srd, soff, m0, tag='dma', sc='sc1'):
    a('s_mov_b32 m0, %s' % m0)
    a('buffer_load_dwordx4 %s, %s, %s offen %s lds' % (voff, srd, soff, sc), tag=tag)

def load_x_tile(a, voff, step_reg, base_reg):
    a('s_mul_i32 s44, %s, %d' % (sW, 20 * 1024))
    a('s_mov_b32 s45, %s' % base_reg)
    for s in range(20):
        a('s_add_u32 m0, s44, %d' % (s * 1024))
        a('buffer_load_dwordx4 %s, %s, s45 offen sc1 lds' % (voff, S_TMP), tag='x')
        if s < 19: a('s_add_u32 s45, s45, %s' % step_reg)

def qkv(a):
    G = helpers()
    l0, l1 = a.newlabel('QKV_p0'), a.newlabel('QKV_src')
    a('s_cmp_eq_u32 %s, 0' % sP); a('s_cbranch_scc1 %s' % l0)
    G.wait_cluster(a, lambda: (a('s_mov_b32 s43, 4')))
    for i in range(4): a('s_mov_b32 s%d, s%d' % (24 + i, 8 + i))
    a('v_mov_b32 v8, %s' % vL16); a('s_mov_b32 s46, 1024'); a('s_mov_b32 s47, %d' % L.X2_[0]); a('s_mov_b32 s48, %d' % L.ST2_[0])
    a('s_branch %s' % l1)
    a.label(l0)
    for i in range(4): a('s_mov_b32 s%d, s%d' % (24 + i, 12 + i))
    a('v_mul_u32_u24 v8, 1280, %s' % vROW); a('v_lshlrev_b32 v9, 4, %s' % vG); a('v_add_u32 v8, v8, v9')
    a('s_mov_b32 s46, 64'); a('s_mov_b32 s47, 0'); a('s_mov_b32 s48, %d' % L.ST0)
    a.label(l1)
    G.stamp(a, 'qkv_go')
    a('s_lshl_b32 s40, %s, 2' % sC); a('s_add_u32 s40, s40, %s' % sW); a('s_mul_i32 s40, s40, 20480'); a('s_add_u32 s47, s47, s40')
    load_x_tile(a, 'v8', 's46', 's47')
    row_stats_issue(a, 's48', 16)
    a('s_lshr_b32 s49, %s, 2' % sJ)
    a('s_and_b32 s50, %s, 3' % sJ)
    a('s_lshl_b32 s40, s49, 2'); a('s_add_u32 s40, s40, %s' % sW); a('s_mul_i32 s40, s40, 10240'); a('s_add_u32 s40, s40, %d' % L.WKV_T)
    for f in range(10):
        a('s_add_u32 s41, s40, %d' % (f * 1024))
        a('buffer_load_dwordx4 v[%d:%d], %s, %s, s41 offen sc1' % (64 + 4 * f, 67 + 4 * f, vL16, S_WS), tag='wkv')
    row_stats_finish(a, 16)
    a('s_lshl_b32 s51, %s, 2' % sJ); a('s_add_u32 s51, s51, %s' % sW)
    a('s_mul_i32 s40, s51, 40960'); a('s_add_u32 s40, s40, %d' % L.WQ_T)
    for f in range(40):
        a('s_add_u32 s41, s40, %d' % (f * 1024))
        a('buffer_load_dwordx4 a[%d:%d], %s, %s, s41 offen sc1' % (4 * f, 4 * f + 3, vL16, S_WS), tag='wq')
    a.wait_vm('wkv')
    a.wait_lg0()
    a('s_barrier')
    G.stamp(a, 'qkv_xready')
    a('s_mul_i32 s40, s50, 20'); a('s_mul_i32 s41, %s, 5' % sW); a('s_add_u32 s40, s40, s41'); a('s_lshl_b32 s40, s40, 10')
    a('v_add_u32 v9, s40, %s' % vL16)
    for s in range(5):
        a('ds_read_b128 v[%d:%d], v9 offset:%d' % (104 + 4 * s, 107 + 4 * s, 1024 * s))
    for r in range(8): a('v_mov_b32 v%d, 0' % (124 + r))
    a.wait_lg0()
    import os
    if os.environ.get('DBG') == 'kv':
        G.dump(a, 104, 0); G.dump(a, 64, 1)
    lv, lr = a.newlabel('KV_isV'), a.newlabel('KV_red')
    a('s_cmp_eq_u32 s49, 0'); a('s_cbranch_scc0 %s' % lv)
    for s in range(5):
        for T in range(2):
            a('v_mfma_f32_16x16x32_bf16 v[%d:%d], v[%d:%d], v[%d:%d], v[%d:%d]' % (124 + 4 * T, 127 + 4 * T, 64 + 8 * s + 4 * T, 67 + 8 * s + 4 * T, 104 + 4 * s, 107 + 4 * s, 124 + 4 * T, 127 + 4 * T))
    a('s_branch %s' % lr)
    a.label(lv)
    for s in range(5):
        for T in range(2):
            a('v_mfma_f32_16x16x32_bf16 v[%d:%d], v[%d:%d], v[%d:%d], v[%d:%d]' % (124 + 4 * T, 127 + 4 * T, 104 + 4 * s, 107 + 4 * s, 64 + 8 * s + 4 * T, 67 + 8 * s + 4 * T, 124 + 4 * T, 127 + 4 * T))
    a.label(lr)
    if os.environ.get('DBG') == 'kv':
        G.dump(a, 124, 2)
    a('s_lshl_b32 s40, %s, 11' % sW); a('s_add_u32 s40, s40, %d' % LDS_RED)
    a('v_add_u32 v9, s40, %s' % vL16)
    a('ds_write_b128 v9, v[124:127]'); a('ds_write_b128 v9, v[128:131] offset:1024')
    a.wait_lg0()
    a('s_barrier')
    lq = a.newlabel('KV_skip')
    a('s_cmp_eq_u32 %s, 0' % sW); a('s_cbranch_scc0 %s' % lq)
    kv_epilogue(a)
    a.label(lq)
    G.stamp(a, 'kv_published')
    a.vm = ['wq'] * 40
    q_proj(a)

def kv_epilogue(a):
    a('v_add_u32 v9, %d, %s' % (LDS_RED, vL16))
    for w in range(4):
        for T in range(2):
            a('ds_read_b128 v[%d:%d], v9 offset:%d' % (64 + 8 * w + 4 * T, 67 + 8 * w + 4 * T, 2048 * w + 1024 * T))
    sel_layer(a, 's44', L.KV_[0], L.KV_[1])
    a('s_lshl_b32 s40, %s, 1' % sC); a('s_lshr_b32 s41, s50, 1'); a('s_add_u32 s40, s40, s41'); a('s_mul_i32 s40, s40, %d' % L.KVREC); a('s_add_u32 s44, s44, s40')
    a.wait_lg0()
    for w in range(1, 4):
        for h in range(4):
            a('v_pk_add_f32 v[%d:%d], v[%d:%d], v[%d:%d]' % (64 + 2 * h, 65 + 2 * h, 64 + 2 * h, 65 + 2 * h, 64 + 8 * w + 2 * h, 65 + 8 * w + 2 * h))
    lv, le = a.newlabel('KVE_V'), a.newlabel('KVE_end')
    a('s_cmp_eq_u32 s49, 0'); a('s_cbranch_scc0 %s' % lv)
    a('v_lshlrev_b32 v9, 4, %s' % vG)
    for kq in range(4):
        for T in range(2):
            a('s_mov_b32 s41, %d' % (L.CSKV + (kq * 2 + 0) * 128 + T * 64))
            a('buffer_load_dwordx4 v[%d:%d], v9, %s, s41 offen sc1' % (80 + 8 * kq + 4 * T, 83 + 8 * kq + 4 * T, S_WS), tag='cs')
    a('s_lshl_b32 s40, s50, 7'); a('s_add_u32 s40, s40, %d' % LDS_STATS)
    a('v_lshlrev_b32 v10, 3, %s' % vROW); a('v_add_u32 v10, s40, v10')
    a('ds_read_b64 v[76:77], v10')
    a.wait_vm('cs'); a.wait_lg0()
    import os
    if os.environ.get('DBG') == 'kv':
        G = helpers(); G.dump(a, 76, 3); G.dump(a, 64, 4); G.dump(a, 80, 5)
    for kq in range(1, 4):
        for h in range(4):
            a('v_pk_add_f32 v[%d:%d], v[%d:%d], v[%d:%d]' % (80 + 2 * h, 81 + 2 * h, 80 + 2 * h, 81 + 2 * h, 80 + 8 * kq + 2 * h, 81 + 8 * kq + 2 * h))
    for r in range(8):
        a('v_mul_f32 v%d, v77, v%d' % (80 + r, 80 + r))
        a('v_fma_f32 v%d, v%d, v76, v%d' % (64 + r, 64 + r, 80 + r))
    a('v_mul_f32 v72, v64, v64')
    for r in range(1, 8): a('v_fma_f32 v72, v%d, v%d, v72' % (64 + r, 64 + r))
    for t in range(4): a('v_cvt_pk_bf16_f32 v%d, v%d, v%d' % (112 + t, 64 + 2 * t, 65 + 2 * t))
    a('s_and_b32 s40, s50, 1'); a('s_lshl_b32 s40, s40, 4')
    a('v_add_u32 v10, s40, %s' % vROW)
    a('v_and_b32 v11, 1, %s' % vG); a('v_lshlrev_b32 v11, 5, v11'); a('v_add_u32 v11, v11, v10'); a('v_lshlrev_b32 v11, 4, v11')
    a('v_lshrrev_b32 v12, 1, %s' % vG); a('v_lshlrev_b32 v12, 3, v12'); a('v_add_u32 v11, v11, v12')
    a('buffer_store_dwordx2 v[112:113], v11, %s, s44 offen sc1' % S_WS)
    a('v_cmp_eq_u32 vcc, 0, %s' % vG)
    a('v_mov_b32 v12, 0x3f803f80'); a('v_mov_b32 v13, 0x00003f80')
    a('v_cndmask_b32 v114, v12, v114, vcc'); a('v_cndmask_b32 v115, v13, v115, vcc')
    a('v_lshlrev_b32 v11, 5, %s' % vG); a('v_add_u32 v11, v11, v10'); a('v_lshlrev_b32 v11, 3, v11')
    a('s_mov_b32 exec_lo, -1'); a('s_mov_b32 exec_hi, 0')
    a('buffer_store_dwordx2 v[114:115], v11, %s, s44 offen offset:%d sc1' % (S_WS, L.KV_K2))
    a('s_mov_b64 exec, -1')
    xsum_g(a, 72, 73)
    max_row16(a, 72)
    sel_layer(a, 's45', L.KN_[0], L.KN_[1])
    a('s_lshl_b32 s40, %s, 2' % sC); a('s_add_u32 s40, s40, s50'); a('s_lshl_b32 s40, s40, 2'); a('s_add_u32 s45, s45, s40')
    a('v_mov_b32 v11, 0')
    a('s_mov_b64 exec, 1')
    a('buffer_store_dword v72, v11, %s, s45 offen sc1' % S_WS)
    a('s_mov_b64 exec, -1')
    a('s_branch %s' % le)
    a.label(lv)
    a('v_lshlrev_b32 v9, 2, %s' % vROW)
    for kq in range(4):
        for T in range(2):
            a('s_mov_b32 s41, %d' % (L.CSKV + (kq * 2 + 1) * 128 + T * 64))
            a('buffer_load_dword v%d, v9, %s, s41 offen sc1' % (80 + 2 * kq + T, S_WS), tag='cs')
    a('s_lshl_b32 s40, s50, 7'); a('s_add_u32 s40, s40, %d' % LDS_STATS)
    a('v_lshlrev_b32 v10, 5, %s' % vG); a('v_add_u32 v10, s40, v10')
    a('ds_read_b128 v[96:99], v10'); a('ds_read_b128 v[100:103], v10 offset:16')
    a.wait_vm('cs'); a.wait_lg0()
    for kq in range(1, 4):
        a('v_pk_add_f32 v[80:81], v[80:81], v[%d:%d]' % (80 + 2 * kq, 81 + 2 * kq))
    for T in range(2):
        for r in range(4):
            a('v_mul_f32 v90, v%d, v%d' % (97 + 2 * r, 80 + T))
            a('v_fma_f32 v%d, v%d, v%d, v90' % (64 + 4 * T + r, 64 + 4 * T + r, 96 + 2 * r))
    for t in range(4): a('v_cvt_pk_bf16_f32 v%d, v%d, v%d' % (112 + t, 64 + 2 * t, 65 + 2 * t))
    a('v_cmp_eq_u32 vcc, 4, %s' % vROW)
    a('v_mov_b32 v12, 0x3f803f80')
    a('v_cndmask_b32 v114, v114, v12, vcc'); a('v_cndmask_b32 v115, v115, v12, vcc')
    a('s_and_b32 s40, s50, 1'); a('s_mul_i32 s40, s40, %d' % (L.KV_V1 - L.KV_V0)); a('s_add_u32 s40, s40, %d' % L.KV_V0); a('s_add_u32 s44, s44, s40')
    a('v_and_b32 v11, 1, %s' % vG); a('v_mul_u32_u24 v11, 21, v11'); a('v_add_u32 v11, v11, %s' % vROW); a('v_lshlrev_b32 v11, 4, v11')
    a('v_lshrrev_b32 v12, 1, %s' % vG); a('v_lshlrev_b32 v12, 3, v12'); a('v_add_u32 v11, v11, v12')
    a('buffer_store_dwordx2 v[112:113], v11, %s, s44 offen sc1' % S_WS)
    a('v_cmp_ge_u32 vcc, 4, %s' % vROW)
    a('s_and_saveexec_b64 s[46:47], vcc')
    a('buffer_store_dwordx2 v[114:115], v11, %s, s44 offen offset:256 sc1' % S_WS)
    a('s_mov_b64 exec, s[46:47]')
    a.label(le)
    a('s_waitcnt vmcnt(0)')
    a('s_lshl_b32 s40, %s, 2' % sROLE); a('s_add_u32 s40, s40, %d' % L.FLAGKV)
    a('s_add_u32 s43, %s, 1' % sP)
    a('v_mov_b32 v11, 0'); a('v_mov_b32 v12, s43')
    a('s_mov_b64 exec, 1')
    a('buffer_store_dword v12, v11, %s, s40 offen sc1' % S_WS)
    a('s_mov_b64 exec, -1')

SA, SB = (64, 96), (80, 112)
PA, PB = 128, 136
OA, OB = 144, 160
QA1, QA2, QB1, QB2 = 176, 180, 184, 188
KVB = (192, 208)
vK1, vK2, vV = 'v224', 'v225', 'v226'

def q_proj(a):
    a.comment('---- Q projection: wave = head, two 32-row tiles')
    a('v_lshrrev_b32 v9, 4, %s' % vLANE); a('v_and_b32 v9, 1, v9'); a('v_mul_u32_u24 v9, %d, v9' % (20 * 1024))
    a('v_lshrrev_b32 v10, 5, %s' % vLANE); a('v_lshlrev_b32 v10, 4, v10'); a('v_add_u32 v10, v10, %s' % vROW); a('v_lshlrev_b32 v10, 4, v10')
    a('v_add_u32 v9, v9, v10')
    a('v_add_u32 v10, %d, v9' % (40 * 1024))
    a('v_lshrrev_b32 v11, 5, %s' % vLANE); a('v_lshlrev_b32 v11, 4, v11')
    for kq in range(4):
        a('s_lshl_b32 s40, s51, 7'); a('s_add_u32 s40, s40, %d' % (L.CSQ + kq * 32 * 128))
        for q in range(3):
            a('buffer_load_dwordx4 v[%d:%d], v11, %s, s40 offen offset:%d sc1' % (16 + 12 * kq + 4 * q, 19 + 12 * kq + 4 * q, S_WS, 32 * q), tag='csq')
    AQ, BQ = 64, 80
    for r in range(16): a('v_mov_b32 v%d, 0' % (AQ + r)); a('v_mov_b32 v%d, 0' % (BQ + r))
    a.wait_vm('wq')
    def rd(s16):
        off = (s16 >> 1) * 1024 + (s16 & 1) * 512
        b = 96 + 8 * (s16 & 1)
        a('ds_read_b128 v[%d:%d], v9 offset:%d' % (b, b + 3, off), tag=s16)
        a('ds_read_b128 v[%d:%d], v10 offset:%d' % (b + 4, b + 7, off), tag=s16)
    rd(0)
    for s16 in range(40):
        if s16 + 1 < 40: rd(s16 + 1)
        a.wait_lg(s16)
        b = 96 + 8 * (s16 & 1)
        a('v_mfma_f32_32x32x16_bf16 v[%d:%d], a[%d:%d], v[%d:%d], v[%d:%d]' % (AQ, AQ + 15, 4 * s16, 4 * s16 + 3, b, b + 3, AQ, AQ + 15))
        a('v_mfma_f32_32x32x16_bf16 v[%d:%d], a[%d:%d], v[%d:%d], v[%d:%d]' % (BQ, BQ + 15, 4 * s16, 4 * s16 + 3, b + 4, b + 7, BQ, BQ + 15))
    a('v_and_b32 v11, 31, %s' % vLANE); a('v_lshlrev_b32 v11, 3, v11'); a('v_add_u32 v11, %d, v11' % LDS_STATS)
    a('ds_read_b64 v[112:113], v11'); a('ds_read_b64 v[114:115], v11 offset:256')
    a.wait_vm('csq')
    for kq in range(1, 4):
        for h in range(6):
            a('v_pk_add_f32 v[%d:%d], v[%d:%d], v[%d:%d]' % (16 + 2 * h, 17 + 2 * h, 16 + 2 * h, 17 + 2 * h, 16 + 12 * kq + 2 * h, 17 + 12 * kq + 2 * h))
    a.wait_lg0()
    for r in range(4): a('v_mul_f32 v%d, %s, v%d' % (112 + r, f2b(QSCALE), 112 + r))
    for (ACC, st, q1, q2, nrm) in ((AQ, 112, QA1, QA2, 116), (BQ, 114, QB1, QB2, 117)):
        for r in range(12):
            a('v_mul_f32 v118, v%d, v%d' % (st + 1, 16 + r))
            a('v_fma_f32 v%d, v%d, v%d, v118' % (ACC + r, ACC + r, st))
        a('v_mul_f32 v%d, v%d, v%d' % (nrm, ACC, ACC))
        for r in range(1, 12): a('v_fma_f32 v%d, v%d, v%d, v%d' % (nrm, ACC + r, ACC + r, nrm))
        for t in range(4): a('v_cvt_pk_bf16_f32 v%d, v%d, v%d' % (q1 + t, ACC + 2 * t, ACC + 2 * t + 1))
        for t in range(2): a('v_cvt_pk_bf16_f32 v%d, v%d, v%d' % (q2 + t, ACC + 8 + 2 * t, ACC + 9 + 2 * t))
    for nrm in (116, 117):
        a('v_mov_b32 v118, v%d' % nrm)
        a('v_permlane32_swap_b32 v%d, v118' % nrm)
        a('v_add_f32 v%d, v%d, v118' % (nrm, nrm))
    a('v_max_f32 v116, v116, v117')
    max_wave(a, 116, 118)
    a('v_readfirstlane_b32 s52, v116')

def att_gap(S, P, q):
    return ['v_exp_f32 v%d, v%d' % (S + 4 * q + i, S + 4 * q + i) for i in range(4)] + \
           ['v_cvt_pk_bf16_f32 v%d, v%d, v%d' % (P + 2 * q + i, S + 4 * q + 2 * i, S + 4 * q + 2 * i + 1) for i in range(2)]
def mf16(d, A, B, c): return 'v_mfma_f32_32x32x16_bf16 v[%d:%d], v[%d:%d], v[%d:%d], %s' % (d, d + 15, A, A + 3, B, B + 3, c if isinstance(c, str) else 'v[%d:%d]' % (c, c + 15))
def mf8(d, A, B, c): return 'v_mfma_f32_32x32x8bf16_1k v[%d:%d], v[%d:%d], v[%d:%d], v[%d:%d]' % (d, d + 15, A, A + 1, B, B + 1, c, c + 15)
CH = 4 * L.KVREC

def kv_lds_off(t):
    return (t % 16) * L.KVREC

def attention(a):
    G = helpers()
    lab = a.newlabel('KVW')
    a('s_cmp_eq_u32 %s, 0' % sW); a('s_cbranch_scc0 %s' % lab)
    a('s_add_u32 s43, %s, 1' % sP); a('s_mov_b32 s40, %d' % L.FLAGKV)
    def nr():
        a('v_min_u32 v8, v8, v9'); a('v_min_u32 v10, v10, v11'); a('v_min_u32 v8, v8, v10'); a('v_cmp_gt_u32 vcc, s43, v8')
    G.spin(a, 'KVP', lambda: a('buffer_load_dwordx4 v[8:11], %s, %s, s40 offen sc1' % (vL16, S_WS)), nr)
    a.label(lab)
    a('s_waitcnt vmcnt(0) lgkmcnt(0)')
    a('s_barrier')
    a.vm = []; a.lg = []
    G.stamp(a, 'kv_allready')
    sel_layer(a, 's53', L.KV_[0], L.KV_[1])
    a('s_mul_i32 s54, %s, 3072' % sW)
    a('s_add_u32 s55, s53, s54')
    def issue_chunk(slot):
        for i in range(3):
            a('s_add_u32 m0, s54, %d' % (slot * CH + i * 1024))
            a('s_add_u32 s40, s55, %d' % (i * 1024))
            a('buffer_load_dwordx4 %s, %s, s40 offen sc1 lds' % (vL16, S_WS), tag='kv')
        a('s_add_u32 s55, s55, %d' % CH)
    for c in range(3): issue_chunk(c)
    sel_layer(a, 's45', L.KN_[0], L.KN_[1])
    a('v_lshlrev_b32 v8, 3, %s' % vLANE)
    a('buffer_load_dwordx2 v[10:11], v8, %s, s45 offen sc1' % S_WS, tag='kn')
    a('v_mov_b32 %s, %s' % (vK1, vL16))
    a('v_lshlrev_b32 %s, 3, %s' % (vK2, vLANE)); a('v_add_u32 %s, %d, %s' % (vK2, L.KV_K2, vK2))
    a('v_lshrrev_b32 v8, 5, %s' % vLANE); a('v_mul_u32_u24 v8, 21, v8'); a('v_and_b32 v9, 31, %s' % vLANE); a('v_add_u32 v8, v8, v9')
    a('v_lshlrev_b32 v8, 4, v8'); a('v_add_u32 %s, %d, v8' % (vV, L.KV_V0))
    a.wait_vm('kn')
    a('v_max_f32 v10, v10, v11')
    max_wave(a, 10, 11)
    a('v_mul_f32 v10, s52, v10')
    a('v_cmp_nge_f32 vcc, %s, v10' % f2b(FAST_T2))
    lfast = a.newlabel('ATT_fast')
    a('s_cmp_eq_u64 vcc, 0'); a('s_cbranch_scc1 %s' % lfast)
    true_max_prepass(a)
    a.label(lfast)
    for r in range(16): a('v_mov_b32 v%d, 0' % (OA + r)); a('v_mov_b32 v%d, 0' % (OB + r))
    for r in range(8): a('v_mov_b32 v%d, 0' % (PB + r))
    for r in range(4): a('v_mov_b32 v%d, 0' % (KVB[1] + 12 + r))
    a('s_waitcnt vmcnt(6)')
    a('s_barrier')
    def ldK(t, buf):
        o = kv_lds_off(t)
        a('ds_read_b128 v[%d:%d], %s offset:%d' % (KVB[buf], KVB[buf] + 3, vK1, o))
        a('ds_read_b64 v[%d:%d], %s offset:%d' % (KVB[buf] + 4, KVB[buf] + 5, vK2, o))
    ldK(0, 0); ldK(1, 1)
    a('ds_read_b128 v[%d:%d], %s offset:%d' % (KVB[0] + 8, KVB[0] + 11, vV, 0))
    a('ds_read_b128 v[%d:%d], %s offset:%d' % (KVB[0] + 12, KVB[0] + 15, vV, L.KV_V1 - L.KV_V0))
    a.wait_lg0()
    a(mf16(SA[0], KVB[0], QA1, '0')); a(mf16(SB[0], KVB[0], QB1, '0'))
    a(mf8(SA[0], KVB[0] + 4, QA2, SA[0])); a(mf8(SB[0], KVB[0] + 4, QB2, SB[0]))
    G.stamp(a, 'att_loop')
    a('s_mov_b32 s56, 4')
    a('s_nop 7'); a('s_nop 7')
    a.loop_begin('L_ATT')
    for t in range(16):
        par = t & 1
        cur, nxt = KVB[par], KVB[1 - par]
        sa, sb, san, sbn = SA[par], SB[par], SA[1 - par], SB[1 - par]
        m = [mf16(san, nxt, QA1, '0'), mf8(san, nxt + 4, QA2, san), mf16(OB, nxt + 12, PB + 4, OB), mf16(OA, cur + 8, PA, OA),
             mf16(sbn, nxt, QB1, '0'), mf8(sbn, nxt + 4, QB2, sbn), mf16(OA, cur + 12, PA + 4, OA), mf16(OB, cur + 8, PB, OB)]
        g = [att_gap(sa, PA, q) for q in range(4)] + [att_gap(sb, PB, q) for q in range(4)]
        oK = kv_lds_off(t + 2); oV = kv_lds_off(t + 1)
        ldk1 = 'ds_read_b128 v[%d:%d], %s offset:%d' % (cur, cur + 3, vK1, oK)
        ldk2 = 'ds_read_b64 v[%d:%d], %s offset:%d' % (cur + 4, cur + 5, vK2, oK)
        ldv0 = 'ds_read_b128 v[%d:%d], %s offset:%d' % (nxt + 8, nxt + 11, vV, oV)
        ldv1 = 'ds_read_b128 v[%d:%d], %s offset:%d' % (nxt + 12, nxt + 15, vV, oV + L.KV_V1 - L.KV_V0)
        post = [[ldk1], [ldk2], [], [ldv0, ldv1][0:1], [ldv1], [], [], ['s_waitcnt lgkmcnt(0)']]
        pre = [[] for _ in range(8)]
        if t % 4 == 2:
            slot = ((t // 4) + 3) % 4
            pre[0] = ['s_waitcnt vmcnt(3)', 's_barrier']
            dm = []
            for i in range(3):
                dm.append(['s_add_u32 m0, s54, %d' % (slot * CH + i * 1024), 's_add_u32 s40, s55, %d' % (i * 1024),
                           'buffer_load_dwordx4 %s, %s, s40 offen sc1 lds' % (vL16, S_WS)])
            post[2] = dm[0]; post[5] = dm[1]; post[6] = dm[2] + ['s_add_u32 s55, s55, %d' % CH]
        for k in range(8):
            for x in pre[k]: a.I(x)
            a.I(m[k])
            for x in post[k]: a.I(x)
            for x in g[k]: a.I(x)
    a('s_sub_u32 s56, s56, 1'); a('s_cmp_lg_u32 s56, 0'); a('s_cbranch_scc1 L_ATT')
    a.loop_end('L_ATT')
    a.vm = []; a.lg = []
    a(mf16(OB, KVB[1] + 12, PB + 4, OB))
    G.stamp(a, 'att_loopend')
    att_epilogue(a)

def true_max_prepass(a):
    a.comment('---- fallback: exact row maxima')
    a('v_lshlrev_b32 v8, 3, %s' % vLANE)
    a('v_mov_b32 v12, 0xff800000'); a('v_mov_b32 v13, 0xff800000')
    a('s_mov_b32 s40, s53'); a('s_mov_b32 s41, 64')
    lp = a.newlabel('MAXP')
    a.label(lp)
    a('buffer_load_dwordx4 v[16:19], %s, %s, s40 offen sc1' % (vL16, S_WS))
    a('buffer_load_dwordx2 v[20:21], v8, %s, s40 offen offset:%d sc1' % (S_WS, L.KV_K2))
    a('s_waitcnt vmcnt(0)')
    a(mf16(64, 16, QA1, '0')); a(mf16(80, 16, QB1, '0'))
    a(mf8(64, 20, QA2, 64)); a(mf8(80, 20, QB2, 80))
    for r in range(16):
        a('v_max_f32 v12, v12, v%d' % (64 + r))
    for r in range(16):
        a('v_max_f32 v13, v13, v%d' % (80 + r))
    a('s_add_u32 s40, s40, %d' % L.KVREC); a('s_sub_u32 s41, s41, 1'); a('s_cmp_lg_u32 s41, 0'); a('s_cbranch_scc1 %s' % lp)
    for (m, q2) in ((12, QA2), (13, QB2)):
        a('v_mov_b32 v14, v%d' % m)
        a('v_permlane32_swap_b32 v%d, v14' % m)
        a('v_max_f32 v%d, v%d, v14' % (m, m))
        a('v_sub_f32 v14, 0, v%d' % m)
        a('v_and_b32 v15, 0xffff0000, v14'); a('v_sub_f32 v14, v14, v15')
        a('v_and_b32 v16, 0xffff0000, v14'); a('v_sub_f32 v14, v14, v16')
        a('v_lshrrev_b32 v15, 16, v15'); a('v_or_b32 v15, v15, v16')
        a('v_lshrrev_b32 v14, 16, v14')
        a('s_mov_b32 s40, 0'); a('s_mov_b32 s41, -1')
        a('v_cndmask_b32 v%d, v%d, v15, s[40:41]' % (q2, q2))
        a('v_cndmask_b32 v%d, v%d, v14, s[40:41]' % (q2 + 1, q2 + 1))

def att_epilogue(a):
    G = helpers()
    sel_layer(a, 's44', L.O_[0], L.O_[1])
    a('s_mul_i32 s45, %s, 80' % sJ); a('s_mul_i32 s40, %s, 20' % sW); a('s_add_u32 s45, s45, s40')
    a('v_lshrrev_b32 v8, 5, %s' % vLANE); a('v_lshlrev_b32 v8, 2, v8'); a('v_add_u32 v8, s45, v8')
    a('v_lshrrev_b32 v9, 4, %s' % vLANE); a('v_and_b32 v9, 1, v9'); a('s_lshl_b32 s40, %s, 2' % sC); a('v_add_u32 v9, s40, v9')
    a('v_mul_u32_u24 v9, %d, v9' % (20 * 1024)); a('v_lshlrev_b32 v10, 4, %s' % vROW); a('v_add_u32 v9, v9, v10')
    for q in range(3):
        a('v_add_u32 v10, %d, v8' % (8 * q))
        a('v_lshrrev_b32 v11, 5, v10'); a('v_lshlrev_b32 v11, 10, v11')
        a('v_bfe_u32 v12, v10, 3, 2'); a('v_lshlrev_b32 v12, 8, v12'); a('v_add_u32 v11, v11, v12')
        a('v_bfe_u32 v12, v10, 2, 1'); a('v_lshlrev_b32 v12, 3, v12'); a('v_add_u32 v11, v11, v12')
        a('v_add_u32 v%d, v9, v11' % (16 + q))
    for rh, O in ((0, OA), (1, OB)):
        a('v_mov_b32 v12, v%d' % (O + 8)); a('v_mov_b32 v13, v%d' % (O + 8))
        a('v_permlane32_swap_b32 v12, v13')
        a('v_rcp_f32 v13, v13')
        for r in range(12): a('v_mul_f32 v%d, v%d, v13' % (O + r, O + r))
        for t in range(6): a('v_cvt_pk_bf16_f32 v%d, v%d, v%d' % (20 + 6 * rh + t, O + 2 * t, O + 2 * t + 1))
        a('s_add_u32 s46, s44, %d' % (rh * 2 * 20 * 1024))
        b = 20 + 6 * rh
        a('buffer_store_dwordx2 v[%d:%d], v16, %s, s46 offen sc1' % (b, b + 1, S_WS))
        a('buffer_store_dwordx2 v[%d:%d], v17, %s, s46 offen sc1' % (b + 2, b + 3, S_WS))
        a('s_mov_b32 exec_lo, -1'); a('s_mov_b32 exec_hi, 0')
        a('buffer_store_dwordx2 v[%d:%d], v18, %s, s46 offen sc1' % (b + 4, b + 5, S_WS))
        a('s_mov_b64 exec, -1')
    G.signal_cluster(a, lambda: flagval(1)(a))

def tile_stores(a, PK, srd, sbase_even_odd):
    pass

def res_epilogue(a, ACC, tiled_base_reg, stats_base, final):
    PKD = 48
    for t in range(10): a('v_cvt_pk_bf16_f32 v%d, v%d, v%d' % (PKD + t, ACC + 2 * t, ACC + 2 * t + 1))
    le, ld = a.newlabel('RE_odd'), a.newlabel('RE_done')
    if not final:
        a('s_lshl_b32 s40, %s, 2' % sC); a('s_add_u32 s40, s40, %s' % sW); a('s_mul_i32 s40, s40, 20')
        a('s_mul_i32 s41, %s, 5' % sJ); a('s_lshr_b32 s41, s41, 1'); a('s_add_u32 s40, s40, s41'); a('s_lshl_b32 s40, s40, 10'); a('s_add_u32 s40, s40, %s' % tiled_base_reg)
        voff, srd, step, fl = vL16, S_WS, 1024, 'sc1'
    else:
        import gen1 as G
        G.rowmajor_voff(a, 'v8', 'v9')
        a('s_mul_i32 s41, %s, 5' % sJ); a('s_lshr_b32 s41, s41, 1'); a('s_lshl_b32 s40, s41, 6')
        voff, srd, step, fl = 'v8', S_OUT, 64, ''
    a('s_bitcmp1_b32 %s, 0' % sJ); a('s_cbranch_scc1 %s' % le)
    a('buffer_store_dwordx4 v[%d:%d], %s, %s, s40 offen %s' % (PKD, PKD + 3, voff, srd, fl))
    a('s_add_u32 s41, s40, %d' % step)
    a('buffer_store_dwordx4 v[%d:%d], %s, %s, s41 offen %s' % (PKD + 4, PKD + 7, voff, srd, fl))
    a('s_add_u32 s41, s40, %d' % (2 * step))
    a('buffer_store_dwordx2 v[%d:%d], %s, %s, s41 offen %s' % (PKD + 8, PKD + 9, voff, srd, fl))
    a('s_branch %s' % ld)
    a.label(le)
    a('buffer_store_dwordx2 v[%d:%d], %s, %s, s40 offen offset:8 %s' % (PKD, PKD + 1, voff, srd, fl))
    a('s_add_u32 s41, s40, %d' % step)
    a('buffer_store_dwordx4 v[%d:%d], %s, %s, s41 offen %s' % (PKD + 2, PKD + 5, voff, srd, fl))
    a('s_add_u32 s41, s40, %d' % (2 * step))
    a('buffer_store_dwordx4 v[%d:%d], %s, %s, s41 offen %s' % (PKD + 6, PKD + 9, voff, srd, fl))
    a.label(ld)
    if not final:
        import gen1 as G
        for t in range(10): a('v_accvgpr_write_b32 a%d, v%d' % (RES + t, PKD + t))
        G.stats_regs(a, ACC, 60)
        G.store_stats(a, 60, stats_base)

def gemm_mtile(a, nks, act_regs, wread, ACC, lds_of):
    pass

def wo(a):
    G = helpers()
    G.wait_cluster(a, lambda: flagval(1)(a))
    G.stamp(a, 'wo_go')
    a('s_mul_i32 s40, %s, %d' % (sJ, 100 * 1024)); a('s_mul_i32 s44, %s, %d' % (sW, 25 * 1024)); a('s_add_u32 s45, s40, s44'); a('s_add_u32 s45, s45, %d' % L.WO_T)
    for f in range(25):
        a('s_add_u32 m0, s44, %d' % (f * 1024))
        a('buffer_load_dwordx4 %s, %s, s45 offen sc1 lds' % (vL16, S_WS), tag='w')
        a('s_add_u32 s45, s45, 1024')
    sel_layer(a, 's46', L.O_[0], L.O_[1])
    a('s_lshl_b32 s40, %s, 2' % sC); a('s_add_u32 s40, s40, %s' % sW); a('s_mul_i32 s40, s40, 20480'); a('s_add_u32 s46, s46, s40')
    for s in range(20):
        a('buffer_load_dwordx4 v[%d:%d], %s, %s, s46 offen sc1' % (96 + 4 * s, 99 + 4 * s, vL16, S_WS), tag='act')
        if s < 19: a('s_add_u32 s46, s46, 1024')
    ACC = 16
    G.unpack_res(a, ACC)
    a.wait_vm('act')
    a('s_barrier')
    G.stamp(a, 'wo_loaded')
    def rd(s):
        b = 176 + 20 * (s & 1)
        for t in range(5):
            o = (s * 5 + t) * 1024
            a('ds_read_b128 v[%d:%d], %s offset:%d' % (b + 4 * t, b + 4 * t + 3, 'v8' if o < 65536 else 'v9', o if o < 65536 else o - 65536), tag=s)
    a('v_mov_b32 v8, %s' % vL16); a('v_add_u32 v9, 0x10000, %s' % vL16)
    rd(0)
    for s in range(20):
        if s + 1 < 20: rd(s + 1)
        a.wait_lg(s)
        b = 176 + 20 * (s & 1)
        for t in range(5):
            a('v_mfma_f32_16x16x32_bf16 v[%d:%d], v[%d:%d], v[%d:%d], v[%d:%d]' % (ACC + 4 * t, ACC + 4 * t + 3, b + 4 * t, b + 4 * t + 3, 96 + 4 * s, 99 + 4 * s, ACC + 4 * t, ACC + 4 * t + 3))
    G.stamp(a, 'wo_mfma')
    sel_layer(a, 's47', L.X1_[0], L.X1_[1]); sel_layer(a, 's48', L.ST1_[0], L.ST1_[1])
    res_epilogue(a, ACC, 's47', 's48', False)
    G.signal_cluster(a, lambda: flagval(2)(a))

def ffn1(a):
    G = helpers()
    G.wait_cluster(a, lambda: flagval(2)(a))
    G.stamp(a, 'ffn1_go')
    for i in range(4): a('s_mov_b32 s%d, s%d' % (24 + i, 8 + i))
    sel_layer(a, 's47', L.X1_[0], L.X1_[1]); sel_layer(a, 's48', L.ST1_[0], L.ST1_[1])
    a('s_lshl_b32 s40, %s, 2' % sC); a('s_add_u32 s40, s40, %s' % sW); a('s_mul_i32 s40, s40, 20480'); a('s_add_u32 s47, s47, s40')
    a('s_mov_b32 s46, 1024')
    load_x_tile(a, vL16, 's46', 's47')
    row_stats_issue(a, 's48', 16)
    a('s_mul_i32 s49, %s, 12' % sJ); a('s_mul_i32 s40, %s, 3' % sW); a('s_add_u32 s49, s49, s40')
    a('v_lshlrev_b32 v9, 4, %s' % vG)
    a('s_lshl_b32 s50, s49, 6')
    for kq in range(4):
        a('s_add_u32 s41, s50, %d' % (L.CS1 + kq * 96 * 64))
        for t in range(3):
            a('buffer_load_dwordx4 v[%d:%d], v9, %s, s41 offen offset:%d sc1' % (64 + 12 * kq + 4 * t, 67 + 12 * kq + 4 * t, S_WS, 64 * t), tag='cs')
    a('s_add_u32 s41, s50, %d' % L.B1P)
    for t in range(3):
        a('buffer_load_dwordx4 v[%d:%d], v9, %s, s41 offen offset:%d sc1' % (112 + 4 * t, 115 + 4 * t, S_WS, 64 * t), tag='cs')
    row_stats_finish(a, 16)
    a('s_lshl_b32 s40, %s, 2' % sJ); a('s_add_u32 s40, s40, %s' % sW); a('s_mul_i32 s40, s40, %d' % (60 * 1024)); a('s_add_u32 s40, s40, %d' % L.W1_T)
    a.wait_vm('cs')
    for f in range(60):
        a('buffer_load_dwordx4 a[%d:%d], %s, %s, s40 offen sc1' % (4 * f, 4 * f + 3, vL16, S_WS), tag='w')
        if f < 59: a('s_add_u32 s40, s40, 1024')
    for kq in range(1, 4):
        for h in range(6):
            a('v_pk_add_f32 v[%d:%d], v[%d:%d], v[%d:%d]' % (64 + 2 * h, 65 + 2 * h, 64 + 2 * h, 65 + 2 * h, 64 + 12 * kq + 2 * h, 65 + 12 * kq + 2 * h))
    CS, B1 = 64, 112
    a.wait_vm('w'); a.wait_lg0()
    a('s_barrier')
    G.stamp(a, 'ffn1_loaded')
    sel_layer(a, 's44', L.H_[0], L.H_[1])
    a('s_lshl_b32 s40, %s, 2' % sC); a('s_mul_i32 s40, s40, 48'); a('s_lshr_b32 s41, s49, 1'); a('s_add_u32 s40, s40, s41'); a('s_lshl_b32 s40, s40, 10'); a('s_add_u32 s44, s44, s40')
    a('v_mov_b32 v8, %s' % vL16)
    a('v_lshlrev_b32 v10, 3, %s' % vROW); a('v_add_u32 v10, %d, v10' % LDS_STATS)
    a('s_mov_b32 s53, 4')
    ACC = 16
    ffn1_consts(a)
    lp = a.newlabel('FFN1_pass')
    a.label(lp)
    for r in range(12): a('v_mov_b32 v%d, 0' % (ACC + r))
    a('ds_read_b64 v[12:13], v10')
    def rd(s):
        b = 32 + 4 * (s % 4)
        a('ds_read_b128 v[%d:%d], v8 offset:%d' % (b, b + 3, s * 1024), tag=s)
    a.lg = ['st']
    rd(0); rd(1); rd(2)
    for s in range(20):
        if s + 3 < 20: rd(s + 3)
        a.wait_lg(s)
        b = 32 + 4 * (s % 4)
        for t in range(3):
            f = s * 3 + t
            a('v_mfma_f32_16x16x32_bf16 v[%d:%d], a[%d:%d], v[%d:%d], v[%d:%d]' % (ACC + 4 * t, ACC + 4 * t + 3, 4 * f, 4 * f + 3, b, b + 3, ACC + 4 * t, ACC + 4 * t + 3))
    for r in range(12):
        z, t1, t2 = ACC + r, 48 + (r % 4) * 2, 49 + (r % 4) * 2
        a('v_fma_f32 v%d, v13, v%d, v%d' % (t1, CS + r, B1 + r))
        a('v_fma_f32 v%d, v%d, v12, v%d' % (z, z, t1))
        a('v_mul_f32 v%d, v%d, v%d' % (t1, z, z))
        a('v_fma_f32 v%d, v%d, v14, v15' % (t1, t1))
        a('v_mul_f32 v%d, v%d, v%d' % (t1, t1, z))
        a('v_exp_f32 v%d, v%d' % (t1, t1))
        a('v_add_f32 v%d, 1.0, v%d' % (t1, t1))
        a('v_rcp_f32 v%d, v%d' % (t1, t1))
        a('v_mul_f32 v%d, v%d, v%d' % (z, z, t1))
    for t in range(6): a('v_cvt_pk_bf16_f32 v%d, v%d, v%d' % (56 + t, ACC + 2 * t, ACC + 2 * t + 1))
    lo, ld = a.newlabel('F1_odd'), a.newlabel('F1_st')
    a('s_bitcmp1_b32 %s, 0' % sW); a('s_cbranch_scc1 %s' % lo)
    a('buffer_store_dwordx4 v[56:59], %s, %s, s44 offen sc1' % (vL16, S_WS))
    a('s_add_u32 s41, s44, 1024')
    a('buffer_store_dwordx2 v[60:61], %s, %s, s41 offen sc1' % (vL16, S_WS))
    a('s_branch %s' % ld)
    a.label(lo)
    a('buffer_store_dwordx2 v[56:57], %s, %s, s44 offen offset:8 sc1' % (vL16, S_WS))
    a('s_add_u32 s41, s44, 1024')
    a('buffer_store_dwordx4 v[58:61], %s, %s, s41 offen sc1' % (vL16, S_WS))
    a.label(ld)
    a('s_add_u32 s44, s44, %d' % (48 * 1024))
    a('v_add_u32 v8, %d, v8' % (20 * 1024)); a('v_add_u32 v10, 128, v10')
    a('s_sub_u32 s53, s53, 1'); a('s_cmp_lg_u32 s53, 0'); a('s_cbranch_scc1 %s' % lp)
    a.lg = []
    G.stamp(a, 'ffn1_comp')
    G.signal_cluster(a, lambda: flagval(3)(a))

def ffn1_consts(a):
    a('v_mov_b32 v14, %s' % f2b(G2)); a('v_mov_b32 v15, %s' % f2b(G1))

def ffn2(a):
    G = helpers()
    G.wait_cluster(a, lambda: flagval(3)(a))
    G.stamp(a, 'ffn2_go')
    NS, NCH = 6, 12
    a('s_mul_i32 s45, %s, %d' % (sJ, 240 * 1024)); a('s_mul_i32 s44, %s, %d' % (sW, 5 * 1024)); a('s_add_u32 s45, s45, s44'); a('s_add_u32 s45, s45, %d' % L.W2_T)
    sel_layer(a, 's46', L.H_[0], L.H_[1])
    a('s_lshl_b32 s40, %s, 2' % sC); a('s_add_u32 s40, s40, %s' % sW); a('s_mul_i32 s40, s40, %d' % (48 * 1024)); a('s_add_u32 s46, s46, s40')
    def issue(ch):
        slot = ch % NS
        for t in range(5):
            a('s_add_u32 m0, s44, %d' % (slot * 20480 + t * 1024))
            a('s_add_u32 s40, s45, %d' % (t * 1024))
            a('buffer_load_dwordx4 %s, %s, s40 offen sc1 lds' % (vL16, S_WS), tag=('ch', ch))
        a('s_add_u32 s45, s45, 20480')
        for i in range(4):
            r = 96 + 16 * slot + 4 * i
            a('buffer_load_dwordx4 v[%d:%d], %s, %s, s46 offen sc1' % (r, r + 3, vL16, S_WS), tag=('ch', ch))
            a('s_add_u32 s46, s46, 1024')
    for ch in range(NS - 1): issue(ch)
    ACC = 16
    G.unpack_res(a, ACC)
    a('s_mul_i32 s40, %s, %d' % (sJ, 5 * 64)); a('s_add_u32 s40, s40, %d' % L.B2P); a('v_lshlrev_b32 v9, 4, %s' % vG)
    for t in range(5):
        a('buffer_load_dwordx4 v[%d:%d], v9, %s, s40 offen offset:%d sc1' % (40 + 4 * t, 43 + 4 * t, S_WS, 64 * t), tag='b2')
    a('v_mov_b32 v8, %s' % vL16); a('v_add_u32 v9, 0x10000, %s' % vL16)
    a.wait_vm('b2')
    for r in range(20): a('v_add_f32 v%d, v%d, v%d' % (ACC + r, ACC + r, 40 + r))
    a.vm = []
    def rd(ch, i):
        b = 196 + 20 * (i & 1)
        o = (ch % NS) * 20480 + i * 5120
        for t in range(5):
            oo = o + t * 1024
            a('ds_read_b128 v[%d:%d], %s offset:%d' % (b + 4 * t, b + 4 * t + 3, 'v8' if oo < 65536 else 'v9', oo if oo < 65536 else oo - 65536), tag=(ch, i))
    pending = []
    for ch in range(NCH):
        if ch >= NS - 1:
            a.wait_vm(('ch', ch))
        a('s_barrier')
        if ch + NS - 1 < NCH: issue(ch + NS - 1)
        rd(ch, 0)
        for i in range(4):
            if i + 1 < 4: rd(ch, i + 1)
            a.wait_lg((ch, i))
            b = 196 + 20 * (i & 1); r = 96 + 16 * (ch % NS) + 4 * i
            for t in range(5):
                a('v_mfma_f32_16x16x32_bf16 v[%d:%d], v[%d:%d], v[%d:%d], v[%d:%d]' % (ACC + 4 * t, ACC + 4 * t + 3, b + 4 * t, b + 4 * t + 3, r, r + 3, ACC + 4 * t, ACC + 4 * t + 3))
    G.stamp(a, 'ffn2_mfma')
    lf, ld = a.newlabel('F2_final'), a.newlabel('F2_done')
    a('s_cmp_eq_u32 %s, 0' % sP); a('s_cbranch_scc0 %s' % lf)
    a('s_mov_b32 s47, %d' % L.X2_[0]); a('s_mov_b32 s48, %d' % L.ST2_[0])
    res_epilogue(a, ACC, 's47', 's48', False)
    G.signal_cluster(a, lambda: a('s_mov_b32 s43, 4'))
    a('s_branch %s' % ld)
    a.label(lf)
    res_epilogue(a, ACC, None, None, True)
    a.wait_vm0()
    a.label(ld)
```

```python
import os, math
import layout as L
import gen1 as G
from phases1 import (S_WS, S_X, S_OUT, S_DBG, S_TMP, sW, sC, sJ, sROLE, sP, vTID, vLANE, vL16, vROW, vG, RES, LDS_STATS, LDS_RED,
                     QSCALE, FAST_T2, G1, G2, f2b, sel_layer, flagval, xsum_g, max_row16, max_wave, row_stats_issue, row_stats_finish,
                     kv_epilogue, att_gap, mf16, mf8, true_max_prepass, SA, SB, PA, PB, OA, OB, QA1, QA2, QB1, QB2, KVB, vK1, vK2, vV)

RING = 102400
CH = 4 * L.KVREC
W2P1 = 83968
WKV = 128
CSK = 168
def V(r, n=4): return 'v[%d:%d]' % (r, r + n - 1)
def A(r, n=4): return 'a[%d:%d]' % (r, r + n - 1)
def mf4(d, x, y, c): return 'v_mfma_f32_16x16x32_bf16 %s, %s, %s, %s' % (d, x, y, c)

sFAST = 's34'
vOFF_F, vOFF_S = 'v5', 'v6'
NOFAST = bool(os.environ.get('NOFAST'))

def handoff_stores(a, items):
    ls, lj = a.newlabel('HS_wt'), a.newlabel('HS_j')
    pend = list(a.vm)
    a('s_cmp_eq_u32 %s, 0' % sFAST); a('s_cbranch_scc1 %s' % ls)
    for t in items: a(t[1:] if t[0] == '!' else t)
    a('s_branch %s' % lj)
    a.label(ls)
    for t in items: a(t[1:] if t[0] == '!' else t + ' sc1')
    a.label(lj)
    a.vm = pend + ['out'] * sum(1 for t in items if t[0] != '!')

def flag_store(a):
    a('s_lshl_b32 s40, %s, 7' % sC); a('s_lshl_b32 s41, %s, 2' % sJ); a('s_add_u32 s40, s40, s41'); a('s_add_u32 s40, s40, %d' % L.FLAGC)
    a('v_mov_b32 v8, 0'); a('v_mov_b32 v9, s43')
    a('s_mov_b64 exec, 1')
    pend = list(a.vm)
    handoff_stores(a, ['buffer_store_dword v9, v8, %s, s40 offen' % S_WS])
    a.vm = pend
    a('s_mov_b64 exec, -1')

def decide_fast(a):
    lab = a.newlabel('DF')
    a('s_cmp_eq_u32 %s, 0' % sP); a('s_cbranch_scc0 %s' % lab)
    a('s_lshl_b32 s40, %s, 5' % sC); a('s_add_u32 s40, s40, %d' % L.XCCW)
    a('v_and_b32 v8, 7, %s' % vLANE); a('v_lshlrev_b32 v8, 2, v8')
    a('buffer_load_dword v9, v8, %s, s40 offen sc1' % S_WS); a.vm.pop()
    a('s_waitcnt vmcnt(0)')
    a('v_cmp_ne_u32 vcc, s35, v9')
    a('s_cmp_eq_u64 vcc, 0'); a('s_cselect_b32 %s, %d, 0' % (sFAST, 0 if NOFAST else 1))
    a('s_cmp_eq_u32 %s, 0' % sFAST); a('s_cselect_b64 s[40:41], 0, -1')
    a('v_mov_b32 v8, 0x40000000')
    a('v_cndmask_b32 %s, v8, %s, s[40:41]' % (vOFF_F, vL16))
    a('v_cndmask_b32 %s, %s, v8, s[40:41]' % (vOFF_S, vL16))
    a.label(lab)

def signal(a, out_tag, val_code, burst=None):
    if burst is not None: burst()
    a.wait_vm(out_tag)
    a('s_barrier')
    lab = a.newlabel('SIG')
    a('s_cmp_eq_u32 %s, 0' % sW); a('s_cbranch_scc0 %s' % lab)
    val_code()
    flag_store(a)
    a.label(lab)

def wait_cluster(a, val_code):
    lab = a.newlabel('WC')
    a('s_cmp_eq_u32 %s, 0' % sW); a('s_cbranch_scc0 %s' % lab)
    val_code()
    a('s_lshl_b32 s40, %s, 7' % sC); a('s_add_u32 s40, s40, %d' % L.FLAGC)
    a('s_mov_b64 exec, 0xff')
    a('v_lshlrev_b32 v8, 2, %s' % vLANE)
    def ld():
        a('buffer_load_dword v9, v8, %s, s40 offen sc1' % S_WS); a.vm.pop()
    G.spin(a, 'WCP', ld, lambda: a('v_cmp_gt_u32 vcc, s43, v9'))
    a('s_mov_b64 exec, -1')
    a.label(lab)
    a('s_barrier')

def seq_loads(n, dst_fn, sreg, tag, lds_base=None, lds_reg=None, always_m0=False):
    groups = []
    for f in range(n):
        g = []
        if f % 4 == 0 and f > 0: g.append(('s_add_u32 %s, %s, 4096' % (sreg, sreg), None))
        if lds_base is not None:
            if f % 4 == 0 or always_m0: g.append(('s_add_u32 m0, %s, %d' % (lds_reg, lds_base + (f - f % 4) * 1024), None))
            g.append(('buffer_load_dwordx4 %s, %s, %s offen offset:%d sc1 lds' % (vL16, S_WS, sreg, (f % 4) * 1024), tag))
        else:
            g.append(('buffer_load_dwordx4 %s, %s, %s, %s offen offset:%d sc1' % (dst_fn(f), vL16, S_WS, sreg, (f % 4) * 1024), tag))
        groups.append(g)
    return groups
def emit_groups(a, groups):
    for g in groups:
        for t, tag in g: a.I(t, tag)

def kv_weight_groups(a):
    a('s_lshr_b32 s49, %s, 2' % sJ)
    a('s_lshl_b32 s40, s49, 2'); a('s_add_u32 s40, s40, %s' % sW); a('s_mul_i32 s57, s40, 10240'); a('s_add_u32 s57, s57, %d' % L.WKV_T)
    a('v_lshlrev_b32 v236, 4, %s' % vG); a('v_lshlrev_b32 v237, 2, %s' % vROW)
    a('s_cmp_eq_u32 s49, 0'); a('s_cselect_b64 s[40:41], -1, 0')
    a('v_cndmask_b32 v236, v237, v236, s[40:41]')
    a('s_lshl_b32 s56, s49, 7'); a('s_add_u32 s56, s56, %d' % L.CSKV)
    g = seq_loads(10, lambda f: V(WKV + 4 * f), 's57', 'wkv')
    for kq in range(4):
        for T in range(2):
            g.append([('buffer_load_dwordx4 %s, v236, %s, s56 offen offset:%d sc1' % (V(CSK + 8 * kq + 4 * T), S_WS, kq * 256 + 64 * T), 'csk')])
    return g

def wq_groups(a, f0, n):
    a('s_lshl_b32 s51, %s, 2' % sJ); a('s_add_u32 s51, s51, %s' % sW)
    a('s_mul_i32 s58, s51, 40960'); a('s_add_u32 s58, s58, %d' % (L.WQ_T + f0 * 1024))
    return seq_loads(n, lambda f: A(4 * (f0 + f)), 's58', 'wq')

def qkv_prefetch(a, first=False):
    emit_groups(a, kv_weight_groups(a))
    lab = a.newlabel('PFQ')
    a('s_cmp_eq_u32 %s, 0' % sW); a('s_cbranch_scc1 %s' % lab)
    emit_groups(a, wq_groups(a, 0, 40))
    a.label(lab)

CSQR = 200
def qkv(a):
    a.comment('==== QKV')
    l0, l1 = a.newlabel('QKV_p0'), a.newlabel('QKV_src')
    a('s_cmp_eq_u32 %s, 0' % sP); a('s_cbranch_scc1 %s' % l0)
    wait_cluster(a, lambda: a('s_mov_b32 s43, 4'))
    for i in range(4): a('s_mov_b32 s%d, s%d' % (24 + i, 8 + i))
    a('v_mov_b32 v8, %s' % vL16); a('s_mov_b32 s46, 1024'); a('s_mov_b32 s47, %d' % L.X2_[0]); a('s_mov_b32 s48, %d' % L.ST2_[0])
    a('s_branch %s' % l1)
    a.label(l0)
    for i in range(4): a('s_mov_b32 s%d, s%d' % (24 + i, 12 + i))
    a('v_mul_u32_u24 v8, 1280, %s' % vROW); a('v_lshlrev_b32 v9, 4, %s' % vG); a('v_add_u32 v8, v8, v9')
    a('s_mov_b32 s46, 64'); a('s_mov_b32 s47, 0'); a('s_mov_b32 s48, %d' % L.ST0)
    a.label(l1)
    G.stamp(a, 'qkv_go')
    a.vm = []
    a('s_lshr_b32 s49, %s, 2' % sJ); a('s_and_b32 s50, %s, 3' % sJ)
    a('s_lshl_b32 s51, %s, 2' % sJ); a('s_add_u32 s51, s51, %s' % sW)
    a('s_lshl_b32 s40, %s, 2' % sC); a('s_mul_i32 s40, s40, 20480'); a('s_add_u32 s47, s47, s40')
    a('s_mul_i32 s41, %s, 5' % sW); a('s_mul_i32 s44, s41, s46'); a('s_lshl_b32 s52, s41, 10')
    a('s_mul_i32 s40, s50, 20480'); a('s_add_u32 s45, s47, s40'); a('s_add_u32 s45, s45, s44'); a('s_add_u32 s44, s52, s40')
    for s in range(5):
        a('s_add_u32 m0, s44, %d' % (s * 1024))
        a('buffer_load_dwordx4 v8, %s, s45 offen sc1 lds' % S_TMP, tag='x0')
        if s < 4: a('s_add_u32 s45, s45, s46')
    row_stats_issue(a, 's48', 16)
    a('v_lshrrev_b32 v11, 5, %s' % vLANE); a('v_lshlrev_b32 v11, 4, v11')
    for kq in range(4):
        a('s_lshl_b32 s40, s51, 7'); a('s_add_u32 s40, s40, %d' % (L.CSQ + kq * 32 * 128))
        for q in range(3):
            a('buffer_load_dwordx4 %s, v11, %s, s40 offen offset:%d sc1' % (V(CSQR + 12 * kq + 4 * q), S_WS, 32 * q))
    lw1, lw23, lj = a.newlabel('QKV_w1'), a.newlabel('QKV_w23'), a.newlabel('QKV_j')
    a('s_cmp_eq_u32 %s, 1' % sW); a('s_cbranch_scc1 %s' % lw1)
    a('s_max_u32 s40, %s, 1' % sW); a('s_add_u32 s40, s40, s50'); a('s_and_b32 s40, s40, 3'); a('s_mul_i32 s44, s40, 20480'); a('s_add_u32 s45, s47, s44')
    for s in range(20):
        a('s_add_u32 m0, s44, %d' % (s * 1024))
        a('buffer_load_dwordx4 v8, %s, s45 offen sc1 lds' % S_TMP)
        if s < 19: a('s_add_u32 s45, s45, s46')
    a('s_cmp_eq_u32 %s, 0' % sW); a('s_cbranch_scc0 %s' % lw23)
    emit_groups(a, wq_groups(a, 0, 40))
    a('s_waitcnt vmcnt(60)')
    a('s_branch %s' % lj)
    a.label(lw23)
    a('s_waitcnt vmcnt(20)')
    a('s_branch %s' % lj)
    a.label(lw1)
    a('s_waitcnt vmcnt(0)')
    a.label(lj)
    a.vm = ['stats']
    row_stats_finish_nw(a, 16)
    a.vm = []
    a.wait_lg0()
    a('s_barrier')
    G.stamp(a, 'qkv_xready')
    XF, KA = 104, 96
    a('s_mul_i32 s40, s50, 20'); a('s_mul_i32 s41, %s, 5' % sW); a('s_add_u32 s40, s40, s41'); a('s_lshl_b32 s40, s40, 10')
    a('v_add_u32 v9, s40, %s' % vL16)
    for s in range(5):
        a('ds_read_b128 %s, v9 offset:%d' % (V(XF + 4 * s), 1024 * s), tag=s)
    lv, lr = a.newlabel('KV_isV'), a.newlabel('KV_red')
    a.wait_lg0()
    a('s_cmp_eq_u32 s49, 0'); a('s_cbranch_scc0 %s' % lv)
    for s in range(5):
        for T in range(2):
            a(mf4(V(KA + 4 * T), V(WKV + 8 * s + 4 * T), V(XF + 4 * s), '0' if s == 0 else V(KA + 4 * T)))
    a('s_branch %s' % lr)
    a.label(lv)
    for s in range(5):
        for T in range(2):
            a(mf4(V(KA + 4 * T), V(XF + 4 * s), V(WKV + 8 * s + 4 * T), '0' if s == 0 else V(KA + 4 * T)))
    a.label(lr)
    a('s_lshl_b32 s40, %s, 11' % sW); a('s_add_u32 s40, s40, %d' % LDS_RED)
    a('v_add_u32 v9, s40, %s' % vL16)
    a('ds_write_b128 v9, %s' % V(KA)); a('ds_write_b128 v9, %s offset:1024' % V(KA + 4))
    a.wait_lg0()
    a('s_barrier')
    lq = a.newlabel('KV_skip')
    a('s_cmp_eq_u32 %s, 1' % sW); a('s_cbranch_scc0 %s' % lq)
    kv_epilogue2(a)
    a.label(lq)
    G.stamp(a, 'kv_published')
    q_proj(a)

def row_stats_finish_nw(a, R):
    n = len(a.items)
    row_stats_finish(a, R)
    from asmlib import Ins
    for i in range(n, len(a.items)):
        it = a.items[i]
        if isinstance(it, Ins) and it.op == 's_waitcnt' and 'vmcnt' in it.text:
            del a.items[i]; break

def kv_epilogue2(a):
    a('v_add_u32 v9, %d, %s' % (LDS_RED, vL16))
    for w in range(4):
        for T in range(2):
            a('ds_read_b128 %s, v9 offset:%d' % (V(64 + 8 * w + 4 * T), 2048 * w + 1024 * T))
    sel_layer(a, 's44', L.KV_[0], L.KV_[1])
    a('s_lshl_b32 s40, %s, 1' % sC); a('s_lshr_b32 s41, s50, 1'); a('s_add_u32 s40, s40, s41'); a('s_mul_i32 s40, s40, %d' % L.KVREC); a('s_add_u32 s44, s44, s40')
    lv, le = a.newlabel('KVE_V'), a.newlabel('KVE_end')
    a('s_cmp_eq_u32 s49, 0'); a('s_cbranch_scc0 %s' % lv)
    a('s_lshl_b32 s40, s50, 7'); a('s_add_u32 s40, s40, %d' % LDS_STATS)
    a('v_lshlrev_b32 v10, 3, %s' % vROW); a('v_add_u32 v10, s40, v10')
    a('ds_read_b64 v[112:113], v10')
    for kq in range(1, 4):
        for h in range(4):
            a('v_pk_add_f32 %s, %s, %s' % (V(CSK + 2 * h, 2), V(CSK + 2 * h, 2), V(CSK + 8 * kq + 2 * h, 2)))
    a('s_and_b32 s40, s50, 1'); a('s_lshl_b32 s40, s40, 4')
    a('v_add_u32 v10, s40, %s' % vROW)
    a('v_and_b32 v11, 1, %s' % vG); a('v_lshlrev_b32 v11, 5, v11'); a('v_add_u32 v11, v11, v10'); a('v_lshlrev_b32 v11, 4, v11')
    a('v_lshrrev_b32 v12, 1, %s' % vG); a('v_lshlrev_b32 v12, 3, v12'); a('v_add_u32 v11, v11, v12')
    a('v_lshlrev_b32 v14, 5, %s' % vG); a('v_add_u32 v14, v14, v10'); a('v_lshlrev_b32 v14, 3, v14')
    a.wait_lg0()
    for w in range(1, 4):
        for h in range(4):
            a('v_pk_add_f32 %s, %s, %s' % (V(64 + 2 * h, 2), V(64 + 2 * h, 2), V(64 + 8 * w + 2 * h, 2)))
    for r in range(8):
        a('v_mul_f32 v%d, v113, v%d' % (CSK + r, CSK + r))
        a('v_fma_f32 v%d, v%d, v112, v%d' % (64 + r, 64 + r, CSK + r))
    for t in range(4): a('v_cvt_pk_bf16_f32 v%d, v%d, v%d' % (116 + t, 64 + 2 * t, 65 + 2 * t))
    a('buffer_store_dwordx2 v[116:117], v11, %s, s44 offen sc1' % S_WS)
    a('v_cmp_eq_u32 vcc, 0, %s' % vG)
    a('v_mov_b32 v12, 0x3f803f80'); a('v_mov_b32 v13, 0x00003f80')
    a('v_cndmask_b32 v118, v12, v118, vcc'); a('v_cndmask_b32 v119, v13, v119, vcc')
    a('s_mov_b32 exec_lo, -1'); a('s_mov_b32 exec_hi, 0')
    a('buffer_store_dwordx2 v[118:119], v14, %s, s44 offen offset:%d sc1' % (S_WS, L.KV_K2))
    a('s_mov_b64 exec, -1')
    a('v_mul_f32 v72, v64, v64')
    for r in range(1, 8): a('v_fma_f32 v72, v%d, v%d, v72' % (64 + r, 64 + r))
    xsum_g(a, 72, 73)
    max_row16(a, 72)
    sel_layer(a, 's45', L.KN_[0], L.KN_[1])
    a('s_lshl_b32 s40, %s, 2' % sC); a('s_add_u32 s40, s40, s50'); a('s_lshl_b32 s40, s40, 2'); a('s_add_u32 s45, s45, s40')
    a('v_mov_b32 v11, 0')
    a('s_mov_b64 exec, 1')
    a('buffer_store_dword v72, v11, %s, s45 offen sc1' % S_WS)
    a('s_mov_b64 exec, -1')
    a('s_branch %s' % le)
    a.label(lv)
    a('s_lshl_b32 s40, s50, 7'); a('s_add_u32 s40, s40, %d' % LDS_STATS)
    a('v_lshlrev_b32 v10, 5, %s' % vG); a('v_add_u32 v10, s40, v10')
    a('ds_read_b128 v[96:99], v10'); a('ds_read_b128 v[100:103], v10 offset:16')
    for kq in range(1, 4):
        for T in range(2): a('v_add_f32 v%d, v%d, v%d' % (CSK + 4 * T, CSK + 4 * T, CSK + 8 * kq + 4 * T))
    a('s_and_b32 s40, s50, 1'); a('s_mul_i32 s40, s40, %d' % (L.KV_V1 - L.KV_V0)); a('s_add_u32 s40, s40, %d' % L.KV_V0); a('s_add_u32 s44, s44, s40')
    a('v_and_b32 v11, 1, %s' % vG); a('v_mul_u32_u24 v11, 21, v11'); a('v_add_u32 v11, v11, %s' % vROW); a('v_lshlrev_b32 v11, 4, v11')
    a('v_lshrrev_b32 v12, 1, %s' % vG); a('v_lshlrev_b32 v12, 3, v12'); a('v_add_u32 v11, v11, v12')
    a.wait_lg0()
    for w in range(1, 4):
        for h in range(4):
            a('v_pk_add_f32 %s, %s, %s' % (V(64 + 2 * h, 2), V(64 + 2 * h, 2), V(64 + 8 * w + 2 * h, 2)))
    for T in range(2):
        for r in range(4):
            a('v_mul_f32 v%d, v%d, v%d' % (90 + (r & 1), 97 + 2 * r, CSK + 4 * T))
            a('v_fma_f32 v%d, v%d, v%d, v%d' % (64 + 4 * T + r, 64 + 4 * T + r, 96 + 2 * r, 90 + (r & 1)))
    for t in range(4): a('v_cvt_pk_bf16_f32 v%d, v%d, v%d' % (116 + t, 64 + 2 * t, 65 + 2 * t))
    a('buffer_store_dwordx2 v[116:117], v11, %s, s44 offen sc1' % S_WS)
    a('v_cmp_eq_u32 vcc, 4, %s' % vROW)
    a('v_mov_b32 v12, 0x3f803f80')
    a('v_cndmask_b32 v118, v118, v12, vcc'); a('v_cndmask_b32 v119, v119, v12, vcc')
    a('v_cmp_ge_u32 vcc, 4, %s' % vROW)
    a('s_and_saveexec_b64 s[46:47], vcc')
    a('buffer_store_dwordx2 v[118:119], v11, %s, s44 offen offset:256 sc1' % S_WS)
    a('s_mov_b64 exec, s[46:47]')
    a.label(le)
    a('s_waitcnt vmcnt(0)')
    a('s_lshl_b32 s40, %s, 2' % sROLE); a('s_add_u32 s40, s40, %d' % L.FLAGKV)
    a('s_add_u32 s43, %s, 1' % sP)
    a('v_mov_b32 v11, 0'); a('v_mov_b32 v12, s43')
    a('s_mov_b64 exec, 1')
    a('buffer_store_dword v12, v11, %s, s40 offen sc1' % S_WS)
    a('s_mov_b64 exec, -1')
    a.lg = []

def q_proj(a):
    a.comment('---- Q projection: wave = head, two 32-row tiles')
    a('v_lshrrev_b32 v9, 4, %s' % vLANE); a('v_and_b32 v9, 1, v9'); a('v_mul_u32_u24 v9, %d, v9' % (20 * 1024))
    a('v_lshrrev_b32 v10, 5, %s' % vLANE); a('v_lshlrev_b32 v10, 4, v10'); a('v_add_u32 v10, v10, %s' % vROW); a('v_lshlrev_b32 v10, 4, v10')
    a('v_add_u32 v9, v9, v10')
    a('v_add_u32 v10, %d, v9' % (40 * 1024))
    AQ, BQ = 64, 80
    l0, l1 = a.newlabel('QP_w0'), a.newlabel('QP_j')
    a('s_cmp_eq_u32 %s, 0' % sW); a('s_cbranch_scc1 %s' % l0)
    a('s_waitcnt vmcnt(1)')
    a('s_cmp_eq_u32 %s, 1' % sW); a('s_cbranch_scc1 %s' % l1)
    a('s_waitcnt vmcnt(0)')
    a('s_branch %s' % l1)
    a.label(l0)
    a('s_waitcnt vmcnt(40)')
    a.label(l1)
    a('s_barrier')
    a.vm = [('wq', f) for f in range(40)]
    def rd(s16):
        off = (s16 >> 1) * 1024 + (s16 & 1) * 512
        b = 96 + 8 * (s16 % 3)
        return ['ds_read_b128 %s, v9 offset:%d' % (V(b), off), 'ds_read_b128 %s, v10 offset:%d' % (V(b + 4), off)]
    for s in range(2):
        for t in rd(s): a(t, tag=s)
    for s16 in range(40):
        if s16 % 4 == 0: a.wait_vm(('wq', s16 + 3))
        a.wait_lg(s16)
        b = 96 + 8 * (s16 % 3)
        nxt = rd(s16 + 2) if s16 + 2 < 40 else []
        a('v_mfma_f32_32x32x16_bf16 %s, %s, %s, %s' % (V(AQ, 16), A(4 * s16), V(b), '0' if s16 == 0 else V(AQ, 16)))
        if nxt: a(nxt[0], tag=s16 + 2)
        a('v_mfma_f32_32x32x16_bf16 %s, %s, %s, %s' % (V(BQ, 16), A(4 * s16), V(b + 4), '0' if s16 == 0 else V(BQ, 16)))
        if nxt: a(nxt[1], tag=s16 + 2)
    a('v_and_b32 v11, 31, %s' % vLANE); a('v_lshlrev_b32 v11, 3, v11'); a('v_add_u32 v11, %d, v11' % LDS_STATS)
    a('ds_read_b64 v[112:113], v11'); a('ds_read_b64 v[114:115], v11 offset:256')
    for kq in range(1, 4):
        for h in range(6):
            a('v_pk_add_f32 %s, %s, %s' % (V(CSQR + 2 * h, 2), V(CSQR + 2 * h, 2), V(CSQR + 12 * kq + 2 * h, 2)))
    a.wait_lg0()
    for r in range(4): a('v_mul_f32 v%d, %s, v%d' % (112 + r, f2b(QSCALE), 112 + r))
    for (ACC, st, q1, q2, nrm) in ((AQ, 112, QA1, QA2, 116), (BQ, 114, QB1, QB2, 117)):
        for r in range(12):
            a('v_mul_f32 v%d, v%d, v%d' % (118 + (r & 1), st + 1, CSQR + r))
            a('v_fma_f32 v%d, v%d, v%d, v%d' % (ACC + r, ACC + r, st, 118 + (r & 1)))
        a('v_mul_f32 v%d, v%d, v%d' % (nrm, ACC, ACC))
        for r in range(1, 12): a('v_fma_f32 v%d, v%d, v%d, v%d' % (nrm, ACC + r, ACC + r, nrm))
        for t in range(4): a('v_cvt_pk_bf16_f32 v%d, v%d, v%d' % (q1 + t, ACC + 2 * t, ACC + 2 * t + 1))
        for t in range(2): a('v_cvt_pk_bf16_f32 v%d, v%d, v%d' % (q2 + t, ACC + 8 + 2 * t, ACC + 9 + 2 * t))
    for nrm in (116, 117):
        a('v_mov_b32 v118, v%d' % nrm)
        a('v_permlane32_swap_b32 v%d, v118' % nrm)
        a('v_add_f32 v%d, v%d, v118' % (nrm, nrm))
    a('v_max_f32 v116, v116, v117')
    max_wave(a, 116, 118)
    a('v_readfirstlane_b32 s52, v116')

def kv_off(t): return (t % 16) * L.KVREC

def attention(a):
    a.comment('==== attention')
    lab = a.newlabel('KVW')
    a('s_cmp_eq_u32 %s, 0' % sW); a('s_cbranch_scc0 %s' % lab)
    a('s_add_u32 s43, %s, 1' % sP); a('s_mov_b32 s40, %d' % L.FLAGKV)
    def nr():
        a('v_min_u32 v8, v8, v9'); a('v_min_u32 v10, v10, v11'); a('v_min_u32 v8, v8, v10'); a('v_cmp_gt_u32 vcc, s43, v8')
    def ld():
        a('buffer_load_dwordx4 v[8:11], %s, %s, s40 offen sc1' % (vL16, S_WS)); a.vm.pop()
    G.spin(a, 'KVP', ld, nr)
    a.label(lab)
    a('s_waitcnt lgkmcnt(0)')
    a('s_barrier')
    a.lg = []
    G.stamp(a, 'kv_allready')
    decide_fast(a)
    sel_layer(a, 's53', L.KV_[0], L.KV_[1])
    a('s_mul_i32 s54, %s, 3072' % sW)
    a('s_add_u32 s55, s53, s54')
    def chunk_group(c):
        g = [('s_add_u32 m0, s54, %d' % (RING + (c % 4) * CH), None)]
        for i in range(3):
            g.append(('buffer_load_dwordx4 %s, %s, s55 offen offset:%d sc1 lds' % (vL16, S_WS, i * 1024), ('kv', c)))
        g.append(('s_add_u32 s55, s55, %d' % CH, None))
        return g
    for c in range(3): emit_groups(a, [chunk_group(c)])
    sel_layer(a, 's45', L.KN_[0], L.KN_[1])
    a('v_lshlrev_b32 v8, 3, %s' % vLANE)
    a('buffer_load_dwordx2 v[10:11], v8, %s, s45 offen sc1' % S_WS, tag='kn')
    a('v_add_u32 %s, %d, %s' % (vK1, RING, vL16))
    a('v_lshlrev_b32 %s, 3, %s' % (vK2, vLANE)); a('v_add_u32 %s, %d, %s' % (vK2, RING + L.KV_K2, vK2))
    a('v_lshrrev_b32 v8, 5, %s' % vLANE); a('v_mul_u32_u24 v8, 21, v8'); a('v_and_b32 v9, 31, %s' % vLANE); a('v_add_u32 v8, v8, v9')
    a('v_lshlrev_b32 v8, 4, v8'); a('v_add_u32 %s, %d, v8' % (vV, RING + L.KV_V0))
    for r in range(16): a('v_mov_b32 v%d, 0' % (OA + r)); a('v_mov_b32 v%d, 0' % (OB + r))
    for r in range(8): a('v_mov_b32 v%d, 0' % (PB + r))
    for r in range(4): a('v_mov_b32 v%d, 0' % (KVB[1] + 12 + r))
    a('s_mul_i32 s59, %s, %d' % (sJ, 100 * 1024)); a('s_mul_i32 s60, %s, %d' % (sW, 25 * 1024)); a('s_add_u32 s59, s59, s60'); a('s_add_u32 s59, s59, %d' % L.WO_T)
    a('s_lshl_b32 s61, %s, 2' % sJ); a('s_add_u32 s61, s61, %s' % sW); a('s_mul_i32 s61, s61, %d' % (60 * 1024)); a('s_add_u32 s61, s61, %d' % L.W1_T)
    pf = seq_loads(25, None, 's59', 'pf', lds_base=0, lds_reg='s60', always_m0=True) + seq_loads(60, lambda f: A(4 * f), 's61', 'pf')
    a.wait_vm('kn')
    a('v_max_f32 v10, v10, v11')
    max_wave(a, 10, 11)
    a('v_mul_f32 v10, s52, v10')
    a('v_cmp_nge_f32 vcc, %s, v10' % f2b(FAST_T2))
    lfast = a.newlabel('ATT_fast')
    pend = list(a.vm)
    a('s_cmp_eq_u64 vcc, 0'); a('s_cbranch_scc1 %s' % lfast)
    true_max_prepass(a)
    a.label(lfast)
    a.vm = pend
    a('s_barrier')
    def ldK(t, buf):
        return ['ds_read_b128 %s, %s offset:%d' % (V(KVB[buf]), vK1, kv_off(t)), 'ds_read_b64 %s, %s offset:%d' % (V(KVB[buf] + 4, 2), vK2, kv_off(t))]
    def ldV(t, buf):
        return ['ds_read_b128 %s, %s offset:%d' % (V(KVB[buf] + 8), vV, kv_off(t)), 'ds_read_b128 %s, %s offset:%d' % (V(KVB[buf] + 12), vV, kv_off(t) + L.KV_V1 - L.KV_V0)]
    for t in ldK(0, 0) + ldK(1, 1) + ldV(0, 0): a(t)
    a.wait_lg0()
    a(mf16(SA[0], KVB[0], QA1, '0')); a(mf16(SB[0], KVB[0], QB1, '0'))
    a(mf8(SA[0], KVB[0] + 4, QA2, SA[0])); a(mf8(SB[0], KVB[0] + 4, QB2, SB[0]))
    G.stamp(a, 'att_loop')
    pfi = 0
    NT = 64
    for t in range(NT):
        par = t & 1
        cur, nxt = KVB[par], KVB[1 - par]
        sa, sb, san, sbn = SA[par], SB[par], SA[1 - par], SB[1 - par]
        last = t == NT - 1
        m = [mf16(san, nxt, QA1, '0'), mf8(san, nxt + 4, QA2, san), mf16(OB, nxt + 12, PB + 4, OB), mf16(OA, cur + 8, PA, OA),
             mf16(sbn, nxt, QB1, '0'), mf8(sbn, nxt + 4, QB2, sbn), mf16(OA, cur + 12, PA + 4, OA), mf16(OB, cur + 8, PB, OB)]
        if last: m[0] = m[1] = m[4] = m[5] = None
        g = [att_gap(sa, PA, q) for q in range(4)] + [att_gap(sb, PB, q) for q in range(4)]
        k = ldK(t + 2, par) if t + 2 < NT else [None, None]
        v = ldV(t + 1, 1 - par) if t + 1 < NT else [None, None]
        post = [[k[0]], [k[1]], [], [v[0]], [v[1]], [], [], ['s_waitcnt lgkmcnt(0)']]
        post = [[(x, None) for x in p if x] for p in post]
        pre = [[] for _ in range(8)]
        c = t // 4
        if t % 4 == 2 and c + 1 < 16:
            pre[0] = [('wait', ('kv', c + 1))]
            if c + 3 < 16:
                gq = chunk_group(c + 3)
                post[2] = gq[0:2]; post[5] = gq[2:3]; post[6] = gq[3:5]
        elif t >= 4 and t % 4 != 2:
            for slot in (2, 5, 6):
                if pfi < len(pf) and (t % 4 != 3 or slot != 6):
                    post[slot] = post[slot] + pf[pfi]; pfi += 1
        for kk in range(8):
            for x in pre[kk]:
                a.wait_vm_opt(x[1]); a('s_barrier')
            if m[kk]: a.I(m[kk])
            for x, tag in post[kk]: a.I(x, tag)
            for x in g[kk]: a.I(x)
    assert pfi == len(pf), (pfi, len(pf))
    a.lg = []
    a(mf16(OB, KVB[1] + 12, PB + 4, OB))
    G.stamp(a, 'att_loopend')
    att_epilogue(a)

def att_epilogue(a):
    a.comment('---- attention epilogue: normalise, store O tile')
    sel_layer(a, 's44', L.O_[0], L.O_[1])
    a('s_mul_i32 s45, %s, 80' % sJ); a('s_mul_i32 s40, %s, 20' % sW); a('s_add_u32 s45, s45, s40')
    a('v_lshrrev_b32 v8, 5, %s' % vLANE); a('v_lshlrev_b32 v8, 2, v8'); a('v_add_u32 v8, s45, v8')
    a('v_lshrrev_b32 v9, 4, %s' % vLANE); a('v_and_b32 v9, 1, v9'); a('s_lshl_b32 s40, %s, 2' % sC); a('v_add_u32 v9, s40, v9')
    a('v_mul_u32_u24 v9, %d, v9' % (20 * 1024)); a('v_lshlrev_b32 v10, 4, %s' % vROW); a('v_add_u32 v9, v9, v10')
    for q in range(3):
        a('v_add_u32 v10, %d, v8' % (8 * q))
        a('v_lshrrev_b32 v11, 5, v10'); a('v_lshlrev_b32 v11, 10, v11')
        a('v_bfe_u32 v12, v10, 3, 2'); a('v_lshlrev_b32 v12, 8, v12'); a('v_add_u32 v11, v11, v12')
        a('v_bfe_u32 v12, v10, 2, 1'); a('v_lshlrev_b32 v12, 3, v12'); a('v_add_u32 v11, v11, v12')
        a('v_add_u32 v%d, v9, v11' % (16 + q))
    for rh, O in ((0, OA), (1, OB)):
        a('v_mov_b32 v12, v%d' % (O + 8)); a('v_mov_b32 v13, v%d' % (O + 8))
        a('v_permlane32_swap_b32 v12, v13')
        a('v_rcp_f32 v13, v13')
        for r in range(12): a('v_mul_f32 v%d, v%d, v13' % (O + r, O + r))
        for t in range(6): a('v_cvt_pk_bf16_f32 v%d, v%d, v%d' % (20 + 6 * rh + t, O + 2 * t, O + 2 * t + 1))
    items = []
    a('s_add_u32 s46, s44, %d' % (2 * 20 * 1024))
    for rh, so in ((0, 's44'), (1, 's46')):
        b = 20 + 6 * rh
        items += ['buffer_store_dwordx2 %s, v16, %s, %s offen' % (V(b, 2), S_WS, so), 'buffer_store_dwordx2 %s, v17, %s, %s offen' % (V(b + 2, 2), S_WS, so)]
    items += ['!s_mov_b32 exec_hi, 0']
    for rh, so in ((0, 's44'), (1, 's46')):
        items += ['buffer_store_dwordx2 %s, v18, %s, %s offen' % (V(20 + 6 * rh + 4, 2), S_WS, so)]
    items += ['!s_mov_b64 exec, -1']
    handoff_stores(a, items)
    signal(a, 'out', lambda: flagval(1)(a))

def res_epilogue(a, ACC, tiled_base_reg, stats_base, final):
    PKD = 48
    if not final:
        a('s_lshl_b32 s40, %s, 2' % sC); a('s_add_u32 s40, s40, %s' % sW); a('s_mul_i32 s40, s40, 20480'); a('s_add_u32 s42, s40, %s' % tiled_base_reg)
        a('s_lshl_b32 s40, %s, 11' % sJ); a('s_add_u32 s40, s40, s42')
        G.res_single_off(a, 's44', 1024); a('s_add_u32 s44, s44, s42')
        voff, srd, step, fl = vL16, S_WS, 1024, 'sc1'
    else:
        G.rowmajor_voff(a, 'v8', 'v9')
        a('s_lshl_b32 s40, %s, 7' % sJ)
        G.res_single_off(a, 's44', 64)
        voff, srd, step, fl = 'v8', S_OUT, 64, ''
    for t in range(10): a('v_cvt_pk_bf16_f32 v%d, v%d, v%d' % (PKD + t, ACC + 2 * t, ACC + 2 * t + 1))
    items = ['buffer_store_dwordx4 %s, %s, %s, s40 offen' % (V(PKD), voff, srd),
             'buffer_store_dwordx4 %s, %s, %s, s40 offen offset:%d' % (V(PKD + 4), voff, srd, step),
             'buffer_store_dwordx2 %s, %s, %s, s44 offen' % (V(PKD + 8, 2), voff, srd)]
    if final:
        for t in items: a(t, tag='out')
    else:
        handoff_stores(a, items)
        G.stats_regs(a, ACC, 60)
        st = G.store_stats(a, 60, stats_base, defer=True)
        handoff_stores(a, [st])
        for t in range(10): a('v_accvgpr_write_b32 a%d, v%d' % (RES + t, PKD + t))

def w2_lds(s):
    if s < 15: return W2P1 + s * 5120
    if s < 31: return (s - 15) * 5120
    if s < 46: return W2P1 + (s - 31) * 5120
    return (s - 46) * 5120

def w2_dma(s0, n, sreg, tag):
    groups = []
    nq = 5 * n
    for i in range((nq + 3) // 4):
        groups.append(i)
    return groups

def lds_pair(o):
    return ('v8', o) if o < 65536 else (('v9', o - 65536) if o < 131072 else ('v10', o - 131072))

def w2_burst(a, s0, n, tag, w0=0):
    nq = 5 * n; nw = 4 - w0
    a('s_sub_u32 s63, %s, %d' % (sW, w0)); a('s_lshl_b32 s63, s63, 10')
    a('s_mul_i32 s62, %s, %d' % (sJ, 240 * 1024)); a('s_add_u32 s62, s62, s63'); a('s_add_u32 s62, s62, %d' % (L.W2_T + s0 * 5120))
    base = w2_lds(s0)
    assert all(w2_lds(s0 + i) == base + i * 5120 for i in range(n))
    out = []
    step = nw * 1024
    for i in range((nq + nw - 1) // nw):
        grp = []
        if nw * i + nw - 1 < nq:
            grp.append(('s_add_u32 m0, s63, %d' % (base + i * step), None))
            grp.append(('buffer_load_dwordx4 %s, %s, s62 offen sc1 lds' % (vL16, S_WS), tag))
            grp.append(('s_add_u32 s62, s62, %d' % step, None))
        else:
            rem = nq - nw * i
            grp.append(('s_cmp_lt_u32 s63, %d' % (rem * 1024), None))
            grp.append(('s_cselect_b32 s40, 0, %d' % step, None))
            grp.append(('s_sub_u32 s41, s62, s40', None))
            grp.append(('s_add_u32 s42, s63, %d' % (base + i * step), None))
            grp.append(('s_sub_u32 m0, s42, s40', None))
            grp.append(('buffer_load_dwordx4 %s, %s, s41 offen sc1 lds' % (vL16, S_WS), tag))
        out.append(grp)
    return out

def signal_w13(a, out_tag, val_code, burst, pre_barrier=True):
    l0, l1 = a.newlabel('SB0'), a.newlabel('SB1')
    if pre_barrier: a('s_barrier')
    a('s_cmp_eq_u32 %s, 0' % sW); a('s_cbranch_scc1 %s' % l0)
    pend = list(a.vm)
    burst()
    a.wait_vm(out_tag)
    after = list(a.vm)
    a('s_branch %s' % l1)
    a.label(l0)
    a('s_waitcnt vmcnt(0)')
    a.label(l1)
    a.vm = after
    a('s_barrier')
    lab = a.newlabel('SIG')
    a('s_cmp_eq_u32 %s, 0' % sW); a('s_cbranch_scc0 %s' % lab)
    val_code()
    flag_store(a)
    a.label(lab)

def lds_bases(a):
    a('v_mov_b32 v8, %s' % vL16); a('v_add_u32 v9, 0x10000, %s' % vL16); a('v_add_u32 v10, 0x20000, %s' % vL16)

def wo(a):
    a.comment('==== output projection + residual')
    ACT, ACC, WF = 96, 16, 176
    G.unpack_res(a, ACC)
    sel_layer(a, 's46', L.O_[0], L.O_[1])
    a('s_lshl_b32 s40, %s, 2' % sC); a('s_add_u32 s40, s40, %s' % sW); a('s_mul_i32 s40, s40, 20480'); a('s_add_u32 s46, s46, s40')
    wait_cluster(a, lambda: flagval(1)(a))
    G.stamp(a, 'wo_go')
    for s, g in enumerate(seq_loads(20, lambda f: V(ACT + 4 * f), 's46', None)):
        for t, tag in g: a.I(t, ('act', s) if 'buffer' in t else None)
    lds_bases(a)
    def rd(s):
        b = WF + 20 * (s % 3)
        out = []
        for t in range(5):
            r, o = lds_pair((s * 5 + t) * 1024)
            out.append('ds_read_b128 %s, %s offset:%d' % (V(b + 4 * t), r, o))
        return out
    gemm5(a, 20, rd, lambda s: V(ACT + 4 * s), ACC, WF, {0: 0, 1: 1, 2: 3, 4: 7, 8: 11, 12: 15, 16: 19})
    G.stamp(a, 'wo_mfma')
    sel_layer(a, 's47', L.X1_[0], L.X1_[1]); sel_layer(a, 's48', L.ST1_[0], L.ST1_[1])
    res_epilogue(a, ACC, 's47', 's48', False)
    signal(a, 'out', lambda: flagval(2)(a))

def gemm5(a, n, rd, act, ACC, WF, act_waits, hook=None):
    for s in range(2):
        for t in rd(s): a(t, tag=s)
    for s in range(n):
        if hook: hook(s)
        if s in act_waits: a.wait_vm_opt(('act', act_waits[s]))
        a.wait_lg(s)
        b = WF + 20 * (s % 3)
        nx = rd(s + 2) if s + 2 < n else [None] * 5
        for t in range(5):
            a(mf4(V(ACC + 4 * t), V(b + 4 * t), act(s), V(ACC + 4 * t)))
            if nx[t]: a(nx[t], tag=s + 2)

COST = {'v_exp_f32': 8, 'v_rcp_f32': 8}
def cost(t): return COST.get(t.split()[0], 4)

def item_cost(f):
    if callable(f): return 4
    if isinstance(f, str): return cost(f)
    if isinstance(f, tuple): return cost(f[0])
    return sum(cost(x[0]) for x in f)
def weave(a, main, fill):
    total = sum(item_cost(f) for f in fill)
    n = len(main); done = 0; fi = 0
    for i, (mf, post) in enumerate(main):
        a.I(mf)
        for p in post:
            if callable(p): p()
            else: a.I(p[0], p[1])
        target = total * (i + 1) / n
        while fi < len(fill) and done < target:
            f = fill[fi]; fi += 1
            if isinstance(f, str): a.I(f)
            elif isinstance(f, tuple): a.I(f[0], f[1])
            else:
                for x in f: a.I(x[0], x[1])
            done += item_cost(f)
    assert fi == len(fill)

def gelu_stream(ACC, CS, B1, ST, PK, T0):
    out = []
    for r in range(0, 12, 2):
        z = (ACC + r, ACC + r + 1); t = (T0, T0 + 1)
        for k in range(2): out.append('v_fma_f32 v%d, v%d, v%d, v%d' % (t[k], ST + 1, CS + r + k, B1 + r + k))
        for k in range(2): out.append('v_fma_f32 v%d, v%d, v%d, v%d' % (z[k], z[k], ST, t[k]))
        for k in range(2): out.append('v_mul_f32 v%d, v%d, v%d' % (t[k], z[k], z[k]))
        for k in range(2): out.append('v_fma_f32 v%d, v%d, v14, v15' % (t[k], t[k]))
        for k in range(2): out.append('v_mul_f32 v%d, v%d, v%d' % (t[k], t[k], z[k]))
        for k in range(2): out.append('v_exp_f32 v%d, v%d' % (t[k], t[k]))
        for k in range(2): out.append('v_add_f32 v%d, 1.0, v%d' % (t[k], t[k]))
        for k in range(2): out.append('v_rcp_f32 v%d, v%d' % (t[k], t[k]))
        for k in range(2): out.append('v_mul_f32 v%d, v%d, v%d' % (z[k], z[k], t[k]))
        out.append('v_cvt_pk_bf16_f32 v%d, v%d, v%d' % (PK + r // 2, z[0], z[1]))
    return out

def ffn1(a):
    a.comment('==== FFN up projection + GELU')
    sel_layer(a, 's47', L.X1_[0], L.X1_[1]); sel_layer(a, 's48', L.ST1_[0], L.ST1_[1])
    a('s_lshl_b32 s40, %s, 2' % sC); a('s_mul_i32 s40, s40, 20480'); a('s_mul_i32 s41, %s, 5120' % sW); a('s_add_u32 s40, s40, s41'); a('s_add_u32 s47, s47, s40')
    a('s_mul_i32 s49, %s, 12' % sJ); a('s_lshl_b32 s40, %s, 1' % sW); a('s_add_u32 s50, s49, s40'); a('s_lshl_b32 s50, s50, 6')
    a('s_add_u32 s51, s49, %s' % sW); a('s_add_u32 s51, s51, 8'); a('s_lshl_b32 s51, s51, 6')
    a('v_lshlrev_b32 v11, 4, %s' % vG)
    CS, B1 = 64, 112
    for kq in range(5):
        base, dst = (L.CS1 + kq * 96 * 64, CS + 12 * kq) if kq < 4 else (L.B1P, B1)
        a('s_add_u32 s41, s50, %d' % base); a('s_add_u32 s42, s51, %d' % base)
        a('buffer_load_dwordx4 %s, v11, %s, s41 offen sc1' % (V(dst), S_WS), tag='cs')
        a('buffer_load_dwordx4 %s, v11, %s, s41 offen offset:64 sc1' % (V(dst + 4), S_WS), tag='cs')
        a('buffer_load_dwordx4 %s, v11, %s, s42 offen sc1' % (V(dst + 8), S_WS), tag='cs')
    wait_cluster(a, lambda: flagval(2)(a))
    G.stamp(a, 'ffn1_go')
    a('s_mul_i32 s44, %s, 5120' % sW)
    for i in range(4):
        a('s_add_u32 m0, s44, %d' % (i * 20480))
        for s in range(4):
            a('buffer_load_dwordx4 %s, %s, s47 offen offset:%d sc1 lds' % (vL16, S_WS, s * 1024), tag=('x', i))
        a('s_add_u32 m0, s44, %d' % (i * 20480 + 4096)); a('s_add_u32 s45, s47, 4096')
        a('buffer_load_dwordx4 %s, %s, s45 offen sc1 lds' % (vL16, S_WS), tag=('x', i))
        a('s_add_u32 s47, s47, 20480')
        if i == 0: row_stats_issue(a, 's48', 216)
    a.wait_vm(('x', 0))
    a('s_barrier')
    G.stamp(a, 'ffn1_loaded')
    sel_layer(a, 's44', L.H_[0], L.H_[1])
    a('s_lshl_b32 s40, %s, 2' % sC); a('s_mul_i32 s40, s40, 48'); a('s_mul_i32 s41, %s, 6' % sJ); a('s_add_u32 s40, s40, s41'); a('s_lshl_b32 s40, s40, 10'); a('s_add_u32 s44, s44, s40')
    a('s_lshr_b32 s45, %s, 1' % sW); a('s_add_u32 s45, s45, 4'); a('s_lshl_b32 s45, s45, 10'); a('s_and_b32 s41, %s, 1' % sW); a('s_lshl_b32 s41, s41, 3'); a('s_add_u32 s45, s45, s41'); a('s_add_u32 s45, s45, s44')
    a('s_lshl_b32 s41, %s, 10' % sW); a('s_add_u32 s44, s44, s41')
    a('v_lshlrev_b32 v10, 3, %s' % vROW); a('v_add_u32 v10, %d, v10' % LDS_STATS)
    a('v_mov_b32 v14, %s' % f2b(G2)); a('v_mov_b32 v15, %s' % f2b(G1))
    ACCS = (16, 28); STS = (12, 40); XR = 200; PK = 48; T0 = 56
    a('v_mov_b32 v8, %s' % vL16); a('v_add_u32 v9, 0x10000, %s' % vL16)
    def rdx(i, s):
        o = (i * 20 + s) * 1024
        r, oo = ('v8', o) if o < 65536 else ('v9', o - 65536)
        return 'ds_read_b128 %s, %s offset:%d' % (V(XR + 4 * ((i * 20 + s) % 4)), r, oo)
    def stores():
        return [('buffer_store_dwordx4 %s, %s, %s, s44 offen' % (V(PK), vOFF_F, S_WS), 'out'),
                ('buffer_store_dwordx2 %s, %s, %s, s45 offen' % (V(PK + 4, 2), vOFF_F, S_WS), 'out'),
                ('buffer_store_dwordx4 %s, %s, %s, s44 offen sc1' % (V(PK), vOFF_S, S_WS), 'out'),
                ('buffer_store_dwordx2 %s, %s, %s, s45 offen sc1' % (V(PK + 4, 2), vOFF_S, S_WS), 'out'),
                ('s_add_u32 s44, s44, %d' % (48 * 1024), None), ('s_add_u32 s45, s45, %d' % (48 * 1024), None)]
    for k in range(3): a(rdx(0, k), tag=('x', 0, k))
    def capture(fn):
        n = len(a.items); vm, lg = list(a.vm), list(a.lg)
        fn()
        items = a.items[n:]; del a.items[n:]
        a.vm, a.lg = vm, lg
        return items
    extra = {1: [], 2: [], 3: []}
    w2a = w2_burst(a, 0, 15, 'w2a')
    extra[1] = w2a[:len(w2a) // 2]; extra[2] = w2a[len(w2a) // 2:]
    extra[3] = kv_weight_groups(a)
    for i in range(4):
        ACC = ACCS[i & 1]
        if i == 0:
            pass
        if i == 1:
            a.wait_vm(('x', 3)); a.wait_lg0(); a('s_barrier')
            if os.environ.get('FINE') == 'ffn1': G.stamp(a, 'f1_bar')
            for k in range(3): a(rdx(1, k), tag=('x', 1, k))
            a('ds_read_b64 %s, v10 offset:%d' % (V(STS[0], 2), 0), tag=('st', 0))
        if i >= 1: a('ds_read_b64 %s, v10 offset:%d' % (V(STS[i & 1], 2), 128 * i), tag=('st', i))
        main = []
        for s in range(20):
            g = i * 20 + s + 3
            ni, ns = g // 20, g % 20
            rd_ok = ni < 4 and not (i == 0 and ni == 1)
            for t in range(3):
                post = []
                if t == 0 and rd_ok: post.append((rdx(ni, ns), ('x', ni, ns)))
                if t == 2 and s + 1 < 20: post.append((lambda tg: (lambda: a.wait_lg(tg) if tg in a.lg else None))(('x', i, s + 1)))
                f = s * 3 + t
                main.append((mf4(V(ACC + 4 * t), A(4 * f), V(XR + 4 * ((i * 20 + s) % 4)), '0' if s == 0 else V(ACC + 4 * t)), post))
        if ('x', i, 0) in a.lg: a.wait_lg(('x', i, 0))
        fill = []
        if i > 0:
            if ('st', i - 1) in a.lg: a.wait_lg(('st', i - 1))
            gs = gelu_stream(ACCS[(i - 1) & 1], CS, B1, STS[(i - 1) & 1], PK, T0) + stores()
            ex = extra[i]
            step = max(1, len(gs) // (len(ex) + 1)); fill = []; e = 0
            for k, x in enumerate(gs):
                fill.append(x)
                if (k + 1) % step == 0 and e < len(ex): fill.append(ex[e]); e += 1
            fill += ex[e:]
        weave(a, main, fill)
        if os.environ.get('FINE') == 'ffn1': G.stamp(a, 'f1_pass%d' % i)
        if i == 0:
            a.wait_vm_opt('cs'); a.wait_vm_opt('stats')
            for kq in range(1, 4):
                for h in range(6):
                    a('v_pk_add_f32 v[%d:%d], v[%d:%d], v[%d:%d]' % (CS + 2 * h, CS + 2 * h + 1, CS + 2 * h, CS + 2 * h + 1, CS + 12 * kq + 2 * h, CS + 12 * kq + 2 * h + 1))
            a.vm = ['stats'] + a.vm
            row_stats_finish_nw(a, 216)
            a.vm = a.vm[0:]
            if os.environ.get('FINE') == 'ffn1': G.stamp(a, 'f1_stats')
    if ('st', 3) in a.lg: a.wait_lg(('st', 3))
    for t in gelu_stream(ACCS[1], CS, B1, STS[1], PK, T0): a(t)
    for t, tag in stores(): a(t, tag)
    a.lg = []
    G.stamp(a, 'ffn1_comp')
    signal_w13(a, 'out', lambda: flagval(3)(a), lambda: emit_groups(a, w2_burst(a, 15, 16, 'w2b', w0=1)))

def ffn2(a):
    a.comment('==== FFN down projection + residual')
    ACC, WF = 16, 40
    G.unpack_res(a, ACC)
    a('s_lshl_b32 s40, %s, 8' % sJ); a('s_add_u32 s40, s40, %d' % L.B2P); a('v_lshlrev_b32 v11, 4, %s' % vG)
    for t in range(4):
        a('buffer_load_dwordx4 %s, v11, %s, s40 offen offset:%d sc1' % (V(WF + 4 * t), S_WS, 64 * t), tag='b2')
    a('s_lshl_b32 s40, %s, 6' % sJ); a('s_add_u32 s40, s40, %d' % (L.B2P + 32 * 64))
    a('buffer_load_dwordx4 %s, v11, %s, s40 offen sc1' % (V(WF + 16), S_WS), tag='b2')
    sel_layer(a, 's46', L.H_[0], L.H_[1])
    a('s_lshl_b32 s40, %s, 2' % sC); a('s_add_u32 s40, s40, %s' % sW); a('s_mul_i32 s40, s40, %d' % (48 * 1024)); a('s_add_u32 s46, s46, s40')
    a.wait_vm('b2')
    for r in range(20): a('v_add_f32 v%d, v%d, v%d' % (ACC + r, ACC + r, WF + r))
    wait_cluster(a, lambda: flagval(3)(a))
    G.stamp(a, 'ffn2_go')
    NR = 20; AB = 160
    def act_load(s):
        g = []
        if s % 4 == 0 and s > 0: g.append(('s_add_u32 s46, s46, 4096', None))
        g.append(('buffer_load_dwordx4 %s, %s, %s, s46 offen offset:%d sc1' % (A(AB + 4 * (s % NR)), vL16, S_WS, (s % 4) * 1024), ('act', s)))
        return g
    for s in range(NR): emit_groups(a, [act_load(s)])
    lds_bases(a)
    def rd(s):
        b = WF + 20 * (s % 3)
        out = []
        for t in range(5):
            r, o = lds_pair(w2_lds(s) + t * 1024)
            out.append('ds_read_b128 %s, %s offset:%d' % (V(b + 4 * t), r, o))
        return out
    def hook(s):
        if os.environ.get('FINE') == 'ffn2' and s in (1, 9, 18, 29, 37): G.stamp(a, 'f2_s%d' % s)
        if s >= 1 and s - 1 + NR < 48: emit_groups(a, [act_load(s - 1 + NR)])
        if s == 9:
            a('s_barrier'); emit_groups(a, w2_burst(a, 31, 8, 'w2c'))
        if s == 18:
            a('s_barrier'); emit_groups(a, w2_burst(a, 39, 7, 'w2d')); emit_groups(a, w2_burst(a, 46, 2, 'w2d'))
        if s == 29:
            a.wait_vm_opt('w2c'); a('s_barrier')
            if os.environ.get('FINE') == 'ffn2': G.stamp(a, 'f2_s29b')
        if s == 37:
            a.wait_vm_opt('w2d'); a('s_barrier')
    waits = {0: 0, 1: 1, 2: 3}
    waits.update({s: min(s + 3, 47) for s in range(4, 48, 4)})
    gemm5(a, 48, rd, lambda s: A(AB + 4 * (s % NR)), ACC, WF, waits, hook)
    G.stamp(a, 'ffn2_mfma')
    lf, ld = a.newlabel('F2_final'), a.newlabel('F2_done')
    pend = list(a.vm)
    a('s_cmp_eq_u32 %s, 0' % sP); a('s_cbranch_scc0 %s' % lf)
    a('s_mov_b32 s47, %d' % L.X2_[0]); a('s_mov_b32 s48, %d' % L.ST2_[0])
    res_epilogue(a, ACC, 's47', 's48', False)
    signal_w13(a, 'out', lambda: a('s_mov_b32 s43, 4'), lambda: emit_groups(a, wq_groups(a, 0, 40)), pre_barrier=False)
    a('s_branch %s' % ld)
    a.label(lf)
    a.vm = pend
    res_epilogue(a, ACC, None, None, True)
    a.wait_vm0()
    a.label(ld)
```

```python
import os, math
import layout as L
import gen1 as G
import phases2 as P2
from phases2 import (V, A, mf4, seq_loads, emit_groups, signal, signal_w13, wait_cluster, handoff_stores, decide_fast, sFAST, vOFF_F, vOFF_S,
                     RING, CH, W2P1, weave, gelu_stream, gemm5, w2_lds, w2_burst, lds_pair, lds_bases, kv_off, att_epilogue, item_cost)
from phases1 import (S_WS, S_X, S_OUT, S_DBG, S_TMP, sW, sC, sJ, sROLE, sP, vTID, vLANE, vL16, vROW, vG, RES, LDS_STATS,
                     QSCALE, FAST_T2, G1, G2, f2b, sel_layer, flagval, xsum_g, max_row16, max_wave, row_stats_issue, row_stats_finish,
                     att_gap, mf16, mf8, true_max_prepass, SA, SB, PA, PB, OA, OB, QA1, QA2, QB1, QB2, KVB, vK1, vK2, vV)
P_WQ, P_WK, P_WV, P_WO, P_W1, P_B1, P_W2, P_B2 = G.P_WQ, G.P_WK, G.P_WV, G.P_WO, G.P_W1, G.P_B1, G.P_W2, G.P_B2

WKV = 128
CSK = 168
CSQ = 104
B1R, CS1R = 228, 240
B2R = 84
ONES = 'v7'
XSLOT = 20480
LQ_ST, LKV_ST = 20480, 122880
RED = 149504
REDS = RED + 8192
CSR = REDS + 2048
KVST = CSR + 512
QST = KVST + 128
PREP_ST = 81920

def dot(a, acc, x, y): a('v_dot2_f32_bf16 v%d, v%d, %s, v%d' % (acc, x, y, acc))

def start_flags(a):
    lab = a.newlabel('ZF')
    a('s_cmp_eq_u32 %s, 0' % sW); a('s_cbranch_scc0 %s' % lab)
    a('v_mov_b32 v8, 0'); a('v_mov_b32 v9, s35')
    a('s_lshl_b32 s40, %s, 7' % sC); a('s_lshl_b32 s41, %s, 2' % sJ); a('s_add_u32 s40, s40, s41'); a('s_add_u32 s40, s40, %d' % L.FLAGC)
    a('s_lshl_b32 s41, %s, 2' % sROLE)
    a('s_mov_b64 exec, 1')
    a('buffer_store_dword v8, v8, %s, s40 offen sc1' % S_WS)
    a('s_add_u32 s40, s41, %d' % L.FLAGKV); a('buffer_store_dword v8, v8, %s, s40 offen sc1' % S_WS)
    a('s_add_u32 s40, s41, %d' % L.PREPF); a('buffer_store_dword v8, v8, %s, s40 offen sc1' % S_WS)
    a('s_add_u32 s40, s41, %d' % L.XCCW); a('buffer_store_dword v9, v8, %s, s40 offen sc1' % S_WS)
    a('s_mov_b64 exec, -1')
    a.label(lab)
    a.vm = []

def x_source(a, layer1):
    if layer1:
        for i in range(4): a('s_mov_b32 s%d, s%d' % (24 + i, 8 + i))
        a('v_mov_b32 v8, %s' % vL16); a('s_mov_b32 s46, 1024'); a('s_mov_b32 s47, %d' % L.X2_[0])
    else:
        for i in range(4): a('s_mov_b32 s%d, s%d' % (24 + i, 12 + i))
        a('v_mul_u32_u24 v8, 1280, %s' % vROW); a('v_lshlrev_b32 v9, 4, %s' % vG); a('v_add_u32 v8, v8, v9')
        a('s_mov_b32 s46, 64'); a('s_mov_b32 s47, 0')
    a('s_lshl_b32 s40, %s, 2' % sC); a('s_mul_i32 s40, s40, 20480'); a('s_add_u32 s47, s47, s40')
    a('s_lshr_b32 s49, %s, 2' % sJ); a('s_and_b32 s50, %s, 3' % sJ)
    a('s_lshl_b32 s51, %s, 2' % sJ); a('s_add_u32 s51, s51, %s' % sW)

def x_first(a, tag):
    a('s_mul_i32 s41, %s, 5' % sW); a('s_mul_i32 s44, s41, s46'); a('s_lshl_b32 s52, s41, 10')
    a('s_mul_i32 s40, s50, 20480'); a('s_add_u32 s45, s47, s40'); a('s_add_u32 s45, s45, s44')
    for s in range(5):
        a('s_add_u32 m0, s52, %d' % (s * 1024))
        a('buffer_load_dwordx4 v8, %s, s45 offen sc1 lds' % S_TMP, tag=tag)
        if s < 4: a('s_add_u32 s45, s45, s46')

def x_rest(a, rreg, tag, s0=0, s1=20):
    if s0 == 0:
        a('s_add_u32 s40, s50, %s' % rreg); a('s_and_b32 s40, s40, 3'); a('s_mul_i32 s40, s40, 20480'); a('s_add_u32 s84, s47, s40')
        a('s_mul_i32 s85, %s, %d' % (rreg, XSLOT))
    for s in range(s0, s1):
        a('s_add_u32 m0, s85, %d' % (s * 1024))
        a('buffer_load_dwordx4 v8, %s, s84 offen sc1 lds' % S_TMP, tag=tag)
        a('s_add_u32 s84, s84, s46')

def wq_groups(a):
    a('s_lshl_b32 s40, %s, 2' % sJ); a('s_add_u32 s40, s40, %s' % sW)
    a('s_mul_i32 s58, s40, 40960'); a('s_add_u32 s58, s58, %d' % L.WQ_T)
    return seq_loads(40, lambda f: A(4 * f), 's58', 'wq')

def kv_weight_groups(a):
    a('s_lshr_b32 s40, %s, 2' % sJ)
    a('s_lshl_b32 s56, s40, 11'); a('s_add_u32 s56, s56, %d' % L.CSKI)
    a('s_lshl_b32 s40, s40, 2'); a('s_add_u32 s40, s40, %s' % sW); a('s_mul_i32 s57, s40, 10240'); a('s_add_u32 s57, s57, %d' % L.WKV_T)
    a('s_lshl_b32 s40, %s, 2' % sJ); a('s_add_u32 s40, s40, %s' % sW); a('s_mul_i32 s64, s40, 3072'); a('s_add_u32 s64, s64, %d' % L.CSQI)
    return (seq_loads(10, lambda f: V(WKV + 4 * f), 's57', 'wkv') + seq_loads(2, lambda f: V(CSK + 4 * f), 's56', 'wkv')
            + seq_loads(3, lambda f: V(CSQ + 4 * f), 's64', 'wkv'))

def stage0(a):
    a.comment('==== layer 0 entry: stage x, Wk/Wv and Wq through LDS')
    x_source(a, False)
    x_first(a, 'x0')
    a('s_cmp_eq_u32 s49, 0')
    a('s_cselect_b32 s40, s%d, s%d' % (P_WK, P_WV)); a('s_cselect_b32 s41, s%d, s%d' % (P_WK + 1, P_WV + 1))
    a('s_mov_b32 s52, s40'); a('s_and_b32 s53, s41, 0xffff'); a('s_mov_b32 s54, 25600'); a('s_mov_b32 s55, 0x20000')
    for i in range(7):
        a('s_lshl_b32 s40, %s, 10' % sW); a('s_add_u32 s40, s40, %d' % (i * 4096)); a('s_min_u32 s40, s40, 24576')
        a('s_add_u32 m0, s40, %d' % LKV_ST)
        a('buffer_load_dwordx4 %s, s[52:55], s40 offen lds' % vL16, tag='wkv')
    G.rowmajor_voff(a, 'v10', 'v11')
    a('s_lshl_b32 s44, %s, 7' % sJ)
    a('buffer_load_dwordx4 v[48:51], v10, %s, s44 offen' % S_X, tag='res')
    a('buffer_load_dwordx4 v[52:55], v10, %s, s44 offen offset:64' % S_X, tag='res')
    G.res_single_off(a, 's44', 64)
    a('buffer_load_dwordx2 v[56:57], v10, %s, s44 offen' % S_X, tag='res')
    G.srd(a, 52, P_WQ, L.D * L.D * 2)
    a('s_mov_b32 s41, 0x1999999a')
    for p in range(5):
        a('v_add_u32 v11, %d, %s' % (64 * p, vLANE)); a('v_mul_hi_u32 v12, v11, s41'); a('v_mul_u32_u24 v13, 10, v12'); a('v_sub_u32 v13, v11, v13')
        a('v_mul_u32_u24 v12, 1280, v12'); a('v_lshlrev_b32 v13, 4, v13'); a('v_add_u32 v%d, v12, v13' % (16 + p))
    a('s_mul_i32 s40, %s, %d' % (sW, 160 * 1280)); a('s_mul_i32 s41, %s, 160' % sJ); a('s_add_u32 s86, s40, s41')
    a('s_mul_i32 s87, %s, 25600' % sW)
    a('s_mul_i32 s74, %s, 13' % sC); a('s_lshr_b32 s74, s74, 6'); a('s_mul_i32 s74, s74, 5'); a('s_sub_u32 s74, %s, s74' % sC)
    def wq_group(k):
        a('s_add_u32 s40, s74, %d' % k); a('s_sub_u32 s41, s40, 5'); a('s_cmp_lt_u32 s40, 5'); a('s_cselect_b32 s40, s40, s41')
        a('s_mul_i32 s45, s40, %d' % (32 * 1280)); a('s_add_u32 s45, s45, s86')
        a('s_mul_i32 s44, s40, 5120'); a('s_add_u32 s44, s44, s87')
        for i in range(5):
            a('s_add_u32 m0, s44, %d' % (LQ_ST + i * 1024))
            a('buffer_load_dwordx4 v%d, s[52:55], s45 offen lds' % (16 + i), tag='wq')
    a.wq_group = wq_group
    wq_group(0); wq_group(1)
    lab = a.newlabel('S0_dbg')
    a('s_cmp_eq_u32 %s, 0' % sW); a('s_cbranch_scc0 %s' % lab)
    a('s_waitcnt vmcnt(25)')
    a('v_mov_b32 v11, %s' % sROLE); a('v_mov_b32 v12, 1')
    a('s_mov_b64 exec, 1')
    a('buffer_store_byte v12, v11, %s, 0 offen sc1' % S_DBG); a.vm.pop()
    a('s_mov_b64 exec, -1')
    a.label(lab)
    a('v_mov_b32 %s, 0x3f803f80' % ONES)
    a.wait_vm('res')
    for t in range(10): a('v_accvgpr_write_b32 a%d, v%d' % (RES + t, 48 + t))
    a('s_barrier')
    G.stamp(a, 'qkv_xready')
    for k in range(2, 5): a.wq_group(k)
    a('v_lshrrev_b32 v9, 2, %s' % vLANE); a('v_and_b32 v9, 3, v9')
    a('v_lshlrev_b32 v10, 3, %s' % vG); a('v_add_u32 v9, v9, v10')
    a('s_mul_i32 s40, %s, 160' % sW); a('v_add_u32 v9, s40, v9')
    a('v_mul_u32_u24 v9, 40, v9'); a('v_and_b32 v10, 3, %s' % vLANE); a('v_lshlrev_b32 v10, 3, v10'); a('v_add_u32 v9, v9, v10')
    a('v_add_u32 v9, %d, v9' % LKV_ST)
    for s in range(5):
        for T in range(2):
            for h in range(2):
                a('ds_read_b64_tr_b16 %s, v9 offset:%d' % (V(WKV + 8 * s + 4 * T + 2 * h, 2), (32 * s + 4 * h) * 40 + 32 * T))
    a.wait_lg0()
    lv, lj = a.newlabel('S0_V'), a.newlabel('S0_j')
    a('s_lshl_b32 s44, %s, 7' % sW); a('s_add_u32 s44, s44, %d' % CSR)
    o4 = 'v[12:15]'
    for r in range(12, 16): a('v_mov_b32 v%d, 0x3f803f80' % r)
    a('s_cmp_eq_u32 s49, 0'); a('s_cbranch_scc0 %s' % lv)
    for s in range(5):
        for T in range(2): a(mf4(V(64 + 4 * T), V(WKV + 8 * s + 4 * T), o4, '0' if s == 0 else V(64 + 4 * T)))
    a('v_lshlrev_b32 v10, 5, %s' % vG); a('v_add_u32 v10, s44, v10')
    a('s_mov_b32 exec_lo, 0x00010001'); a('s_mov_b32 exec_hi, 0x00010001')
    a('ds_write_b128 v10, %s' % V(64)); a('ds_write_b128 v10, %s offset:16' % V(68))
    a('s_mov_b64 exec, -1')
    a('s_branch %s' % lj)
    a.label(lv)
    for s in range(5):
        for T in range(2): a(mf4(V(64 + 4 * T), o4, V(WKV + 8 * s + 4 * T), '0' if s == 0 else V(64 + 4 * T)))
    a('v_lshlrev_b32 v10, 3, %s' % vROW); a('v_add_u32 v10, s44, v10')
    a('v_mov_b32 v65, v68')
    a('s_mov_b64 exec, 0xffff')
    a('ds_write_b64 v10, v[64:65]')
    a('s_mov_b64 exec, -1')
    a.label(lj)
    a.lg = []

def csk_reduce0(a):
    lv, lj = a.newlabel('CK_V'), a.newlabel('CK_j')
    a('s_cmp_eq_u32 s49, 0'); a('s_cbranch_scc0 %s' % lv)
    a('v_lshlrev_b32 v10, 5, %s' % vG); a('v_add_u32 v10, %d, v10' % CSR)
    for w in range(4):
        for T in range(2): a('ds_read_b128 %s, v10 offset:%d' % (V(176 + 8 * w + 4 * T), 128 * w + 16 * T))
    a.wait_lg0()
    for r in range(8):
        a('v_add_f32 v%d, v%d, v%d' % (176 + r, 176 + r, 184 + r)); a('v_add_f32 v%d, v%d, v%d' % (192 + r, 192 + r, 200 + r))
        a('v_add_f32 v%d, v%d, v%d' % (CSK + r, 176 + r, 192 + r))
    a('s_branch %s' % lj)
    a.label(lv)
    a('v_lshlrev_b32 v10, 3, %s' % vROW); a('v_add_u32 v10, %d, v10' % CSR)
    for w in range(4): a('ds_read_b64 %s, v10 offset:%d' % (V(176 + 2 * w, 2), 128 * w))
    a.wait_lg0()
    for T in range(2):
        a('v_add_f32 v%d, v%d, v%d' % (176 + T, 176 + T, 178 + T)); a('v_add_f32 v%d, v%d, v%d' % (180 + T, 180 + T, 182 + T))
        a('v_add_f32 v%d, v%d, v%d' % (CSK + 4 * T, 176 + T, 180 + T))
    a.label(lj)

def publish_tiled_weights(a):
    pend = list(a.vm)
    l1, l2, l3 = a.newlabel('PW1'), a.newlabel('PW2'), a.newlabel('PW3')
    a('s_cmp_ge_u32 %s, 20' % sC); a('s_cbranch_scc1 %s' % l1)
    a('s_mul_i32 s44, s51, 40960'); a('s_lshl_b32 s40, %s, 11' % sC); a('s_add_u32 s44, s44, s40'); a('s_add_u32 s44, s44, %d' % L.WQ_T)
    end = a.newlabel('PWq')
    for c in range(20):
        nx = a.newlabel('PWc')
        a('s_cmp_eq_u32 %s, %d' % (sC, c)); a('s_cbranch_scc0 %s' % nx)
        a('buffer_store_dwordx4 %s, %s, %s, s44 offen sc1' % (A(8 * c), vL16, S_WS))
        a('buffer_store_dwordx4 %s, %s, %s, s44 offen offset:1024 sc1' % (A(8 * c + 4), vL16, S_WS))
        a('s_branch %s' % end)
        a.label(nx)
    a.label(end)
    a.label(l1)
    a('s_cmp_eq_u32 %s, 20' % sC); a('s_cbranch_scc0 %s' % l2)
    a('s_mul_i32 s44, s51, 3072'); a('s_add_u32 s44, s44, %d' % L.CSQI)
    for q in range(3): a('buffer_store_dwordx4 %s, %s, %s, s44 offen offset:%d sc1' % (V(CSQ + 4 * q), vL16, S_WS, 1024 * q))
    a.label(l2)
    a('s_cmp_eq_u32 %s, 21' % sC); a('s_cbranch_scc0 %s' % l3)
    a('s_and_b32 s40, %s, 3' % sJ); a('s_cmp_eq_u32 s40, 0'); a('s_cbranch_scc0 %s' % l3)
    a('s_lshl_b32 s40, s49, 2'); a('s_add_u32 s40, s40, %s' % sW); a('s_mul_i32 s44, s40, 10240'); a('s_add_u32 s44, s44, %d' % L.WKV_T)
    for f in range(10):
        if f and f % 4 == 0: a('s_add_u32 s44, s44, 4096')
        a('buffer_store_dwordx4 %s, %s, %s, s44 offen offset:%d sc1' % (V(WKV + 4 * f), vL16, S_WS, (f % 4) * 1024))
    a('s_cmp_eq_u32 %s, 1' % sW); a('s_cbranch_scc0 %s' % l3)
    a('s_lshl_b32 s44, s49, 11'); a('s_add_u32 s44, s44, %d' % L.CSKI)
    for f in range(2): a('buffer_store_dwordx4 %s, %s, %s, s44 offen offset:%d sc1' % (V(CSK + 4 * f), vL16, S_WS, 1024 * f))
    a.label(l3)
    a.vm = pend + ['prepst']

def stage0_q(a):
    a('s_waitcnt vmcnt(0)')
    kv_flag(a)
    a('s_barrier')
    a('v_lshrrev_b32 v9, 2, %s' % vLANE); a('v_and_b32 v9, 3, v9'); a('v_lshrrev_b32 v10, 5, %s' % vLANE); a('v_lshlrev_b32 v10, 3, v10'); a('v_add_u32 v9, v9, v10')
    a('v_mul_u32_u24 v9, 160, v9')
    a('v_and_b32 v10, 1, %s' % vG); a('v_lshlrev_b32 v10, 5, v10'); a('v_add_u32 v9, v9, v10')
    a('v_and_b32 v10, 3, %s' % vLANE); a('v_lshlrev_b32 v10, 3, v10'); a('v_add_u32 v9, v9, v10')
    a('s_mul_i32 s40, %s, 40' % sW); a('s_add_u32 s40, s40, %d' % LQ_ST); a('v_add_u32 v9, s40, v9')
    a('v_add_u32 v10, 0xfa00, v9')
    n = 0
    for f in range(40):
        for h in range(2):
            row = 16 * f + 4 * h
            reg, off = ('v9', row * 160) if row < 400 else ('v10', (row - 400) * 160)
            a('ds_read_b64_tr_b16 %s, %s offset:%d' % (A(4 * f + 2 * h, 2), reg, off))
            n += 1
            if n % 12 == 0: a('s_waitcnt lgkmcnt(4)')
    a.wait_lg0()
    a('s_barrier')
    lab = a.newlabel('S0_xr')
    a('s_cmp_eq_u32 %s, 1' % sW); a('s_cbranch_scc1 %s' % lab)
    a('s_max_u32 s37, %s, 1' % sW)
    x_source_regs_note = None
    x_rest(a, 's37', None)
    a.label(lab)
    a.vm = []
    prep_issue(a)
    for r in range(12, 16): a('v_mov_b32 v%d, 0x3f803f80' % r)
    for f in range(40):
        a('v_mfma_f32_32x32x16_bf16 %s, %s, v[12:15], %s' % (V(64, 16), A(4 * f), '0' if f == 0 else V(64, 16)))
    for r in range(12): a('v_mov_b32 v%d, v%d' % (CSQ + r, 64 + r))

def kv_flag(a):
    lab = a.newlabel('KVF')
    a('s_cmp_eq_u32 %s, 1' % sW); a('s_cbranch_scc0 %s' % lab)
    a('s_lshl_b32 s40, %s, 2' % sROLE); a('s_add_u32 s40, s40, %d' % L.FLAGKV)
    a('s_add_u32 s43, %s, 1' % sP)
    a('v_mov_b32 v11, 0'); a('v_mov_b32 v12, s43')
    a('s_mov_b64 exec, 1')
    a('buffer_store_dword v12, v11, %s, s40 offen sc1' % S_WS); a.vm.pop()
    a('s_mov_b64 exec, -1')
    a.label(lab)

def prep_issue(a):
    l2, lo, ln, lj = (a.newlabel(x) for x in ('PI2', 'PIo', 'PIn', 'PIj'))
    def task(ptr, size, RS, nb, first, kmul, cbshift):
        G.srd(a, 52, ptr, size)
        a('s_sub_u32 s40, %s, %d' % (sROLE, first))
        a('s_lshr_b32 s65, s40, %d' % cbshift)
        a('s_and_b32 s40, s40, %d' % ((1 << cbshift) - 1)); a('s_mul_i32 s66, s40, %d' % kmul)
        a('v_lshrrev_b32 v11, 3, %s' % vLANE); a('v_mul_u32_u24 v11, %d, v11' % RS); a('v_and_b32 v12, 7, %s' % vLANE); a('v_lshlrev_b32 v12, 4, v12'); a('v_add_u32 v11, v11, v12')
        a('s_mul_i32 s45, s66, %d' % (32 * RS)); a('s_lshl_b32 s40, s65, 7'); a('s_add_u32 s45, s45, s40')
        a('s_mul_i32 s40, %s, %d' % (sW, 8 * RS)); a('s_add_u32 s45, s45, s40')
        a('s_lshl_b32 s44, %s, 10' % sW)
        for b in range(6):
            bb = min(b, nb - 1)
            a('s_add_u32 m0, s44, %d' % (PREP_ST + bb * 4096))
            a('buffer_load_dwordx4 v11, s[52:55], s45 offen lds')
            if b + 1 < nb: a('s_add_u32 s45, s45, %d' % (32 * RS))
    a('s_cmp_lt_u32 %s, 96' % sROLE); a('s_cbranch_scc0 %s' % l2)
    task(P_W1, L.D * L.F * 2, L.F * 2, 5, 0, 5, 2); a('s_branch %s' % lj)
    a.label(l2)
    a('s_cmp_lt_u32 %s, 176' % sROLE); a('s_cbranch_scc0 %s' % lo)
    task(P_W2, L.F * L.D * 2, L.D * 2, 6, 96, 6, 3); a('s_branch %s' % lj)
    a.label(lo)
    ln2 = a.newlabel('PIx')
    a('s_cmp_lt_u32 %s, 216' % sROLE); a('s_cbranch_scc0 %s' % ln2)
    task(P_WO, L.D * L.D * 2, L.D * 2, 5, 176, 5, 2)
    a('s_branch %s' % lj)
    a.label(ln2)
    G.srd(a, 52, P_WO, L.D * L.D * 2)
    a('v_mov_b32 v11, 0x40000000')
    for b in range(6):
        a('s_mov_b32 m0, %d' % PREP_ST)
        a('buffer_load_dwordx4 v11, s[52:55], 0 offen lds')
    a.label(lj)
    a.vm = []

def prep_process(a):
    l2, lo, lb, lb2, lj = (a.newlabel(x) for x in ('PP2', 'PPo', 'PPb', 'PPb2', 'PPj'))
    a('v_lshrrev_b32 v9, 2, %s' % vLANE); a('v_and_b32 v9, 3, v9'); a('v_lshlrev_b32 v10, 3, %s' % vG); a('v_add_u32 v9, v9, v10'); a('v_lshlrev_b32 v9, 7, v9')
    a('v_and_b32 v10, 3, %s' % vLANE); a('v_lshlrev_b32 v10, 4, v10'); a('v_add_u32 v9, v9, v10')
    a('s_lshr_b32 s40, %s, 1' % sW); a('s_lshl_b32 s40, s40, 6'); a('s_and_b32 s41, %s, 1' % sW); a('s_lshl_b32 s41, s41, 3'); a('s_add_u32 s40, s40, s41')
    a('s_add_u32 s40, s40, %d' % PREP_ST); a('v_add_u32 v9, s40, v9')
    def frags(nb):
        for b in range(nb):
            for h in range(2): a('ds_read_b64_tr_b16 %s, v9 offset:%d' % (V(16 + 4 * b + 2 * h, 2), b * 4096 + h * 512))
        a('s_lshl_b32 s43, s65, 2'); a('s_add_u32 s43, s43, %s' % sW)
        a('s_mov_b32 s44, s66')
    def stores(nb, stride):
        a.wait_lg0()
        for b in range(nb):
            a('buffer_store_dwordx4 %s, %s, %s, s45 offen sc1' % (V(16 + 4 * b), vL16, S_WS))
            if b + 1 < nb: a('s_add_u32 s45, s45, %d' % stride)
    def d5(base, ns):
        a('s_lshr_b32 s45, s43, 2'); a('s_and_b32 s48, s43, 3'); a('s_sub_u32 s41, s43, 32')
        a('s_cmp_lt_u32 s43, 32'); a('s_cselect_b32 s45, s45, s41'); a('s_cselect_b32 s48, s48, 4')
        a('s_mul_i32 s45, s45, %d' % ns); a('s_add_u32 s45, s45, s44'); a('s_mul_i32 s45, s45, 5'); a('s_add_u32 s45, s45, s48')
        a('s_lshl_b32 s45, s45, 10'); a('s_add_u32 s45, s45, %d' % base)
    a('s_cmp_lt_u32 %s, 96' % sROLE); a('s_cbranch_scc0 %s' % l2)
    frags(5)
    a('s_mul_i32 s45, s43, 43'); a('s_lshr_b32 s45, s45, 9'); a('s_mul_i32 s48, s45, 12'); a('s_sub_u32 s48, s43, s48')
    a('s_lshr_b32 s40, s48, 1'); a('s_and_b32 s41, s48, 1'); a('s_sub_u32 s42, s48, 8')
    a('s_cmp_lt_u32 s48, 8'); a('s_cselect_b32 s40, s40, s42'); a('s_cselect_b32 s41, s41, 2')
    a('s_lshl_b32 s45, s45, 2'); a('s_add_u32 s45, s45, s40'); a('s_mul_i32 s45, s45, 20'); a('s_add_u32 s45, s45, s44'); a('s_mul_i32 s45, s45, 3'); a('s_add_u32 s45, s45, s41')
    a('s_lshl_b32 s45, s45, 10'); a('s_add_u32 s45, s45, %d' % L.W1_T)
    stores(5, 3072)
    a('s_branch %s' % lj)
    a.label(l2)
    a('s_cmp_lt_u32 %s, 176' % sROLE); a('s_cbranch_scc0 %s' % lo)
    frags(6); d5(L.W2_T, 48); stores(6, 5120)
    a('s_branch %s' % lj)
    a.label(lo)
    a('s_cmp_lt_u32 %s, 216' % sROLE); a('s_cbranch_scc0 %s' % lb)
    frags(5); d5(L.WO_T, 20); stores(5, 5120)
    a('s_branch %s' % lj)
    a.label(lb)
    def bias(ptr, n, dest, first):
        G.srd(a, 52, ptr, n * 2)
        a('s_sub_u32 s40, %s, %d' % (sROLE, first)); a('s_lshl_b32 s40, s40, 2'); a('s_add_u32 s40, s40, %s' % sW); a('s_lshl_b32 s41, s40, 6')
        a('v_add_u32 v16, s41, %s' % vLANE)
        a('v_lshrrev_b32 v17, 5, v16'); a('v_lshlrev_b32 v17, 5, v17')
        a('v_lshrrev_b32 v18, 4, v16'); a('v_and_b32 v18, 1, v18'); a('v_lshlrev_b32 v18, 2, v18'); a('v_add_u32 v17, v17, v18')
        a('v_lshrrev_b32 v18, 2, %s' % vROW); a('v_lshlrev_b32 v18, 3, v18'); a('v_add_u32 v17, v17, v18')
        a('v_and_b32 v18, 3, %s' % vROW); a('v_add_u32 v17, v17, v18'); a('v_lshlrev_b32 v17, 1, v17')
        a('buffer_load_ushort v19, v17, s[52:55], 0 offen')
        a('v_lshlrev_b32 v16, 2, v16')
        a('v_cmp_gt_u32 vcc, %d, v16' % (n * 4))
        a('s_waitcnt vmcnt(0)')
        a('v_lshlrev_b32 v19, 16, v19')
        a('s_and_saveexec_b64 s[46:47], vcc')
        a('s_mov_b32 s45, %d' % dest)
        a('buffer_store_dword v19, v16, %s, s45 offen sc1' % S_WS)
        a('s_mov_b64 exec, s[46:47]')
    a('s_cmp_lt_u32 %s, 224' % sROLE); a('s_cbranch_scc0 %s' % lb2)
    bias(P_B1, L.F, L.B1P, 216)
    a('s_branch %s' % lj)
    a.label(lb2)
    a('s_cmp_lt_u32 %s, 232' % sROLE); a('s_cbranch_scc0 %s' % lj)
    bias(P_B2, L.D, L.B2P, 224)
    a.label(lj)
    a.lg = []

WQ_AHEAD = 12
XF, KA, SS = 16, 36, 44
def qkv(a):
    a.comment('==== QKV')
    l0, l1 = a.newlabel('QKV_l0'), a.newlabel('QKV_kv')
    a('s_cmp_eq_u32 %s, 0' % sP); a('s_cbranch_scc1 %s' % l1)
    wait_cluster(a, lambda: a('s_mov_b32 s43, 4'))
    G.stamp(a, 'qkv_go')
    x_source(a, True)
    x_first(a, 'x0')
    lw1, lj = a.newlabel('QKV_w1'), a.newlabel('QKV_j')
    a('s_max_u32 s37, %s, 1' % sW)
    a('s_cmp_eq_u32 %s, 1' % sW); a('s_cbranch_scc1 %s' % lw1)
    x_rest(a, 's37', None, 0, 8)
    a('s_waitcnt vmcnt(8)')
    a('s_branch %s' % lj)
    a.label(lw1)
    a('s_waitcnt vmcnt(0)')
    a.label(lj)
    a.vm = []
    a('s_barrier')
    G.stamp(a, 'qkv_xready')
    a.label(l1)
    a('s_mul_i32 s40, %s, 5120' % sW); a('v_add_u32 v9, s40, %s' % vL16)
    for s in range(5): a('ds_read_b128 %s, v9 offset:%d' % (V(XF + 4 * s), 1024 * s), tag=s)
    a('v_mov_b32 v%d, 0' % SS); a('v_mov_b32 v%d, 0' % (SS + 1))
    a('s_lshl_b32 s40, %s, 11' % sW); a('s_add_u32 s40, s40, %d' % RED); a('v_add_u32 v10, s40, %s' % vL16)
    a('s_lshl_b32 s40, %s, 9' % sW); a('s_add_u32 s40, s40, %d' % REDS); a('v_lshlrev_b32 v11, 3, %s' % vLANE); a('v_add_u32 v11, s40, v11')
    lv, lr = a.newlabel('KV_isV'), a.newlabel('KV_red')
    a.wait_lg0()
    def part(isV):
        for s in range(5):
            for T in range(2):
                x, w = V(XF + 4 * s), V(WKV + 8 * s + 4 * T)
                a(mf4(V(KA + 4 * T), x if isV else w, w if isV else x, '0' if s == 0 else V(KA + 4 * T)))
    a('s_cmp_eq_u32 s49, 0'); a('s_cbranch_scc0 %s' % lv)
    part(False)
    a('s_branch %s' % lr)
    a.label(lv)
    part(True)
    a.label(lr)
    for r in range(20):
        dot(a, SS, XF + r, ONES); dot(a, SS + 1, XF + r, 'v%d' % (XF + r))
    a('ds_write_b64 v11, %s' % V(SS, 2))
    a('ds_write_b128 v10, %s' % V(KA)); a('ds_write_b128 v10, %s offset:1024' % V(KA + 4))
    a.wait_lg0()
    a('s_barrier')
    lb = a.newlabel('QKV_bulk'); lb2 = a.newlabel('QKV_bulk2')
    a('s_cmp_eq_u32 %s, 0' % sP); a('s_cbranch_scc1 %s' % lb)
    a('s_cmp_eq_u32 %s, 1' % sW); a('s_cbranch_scc1 %s' % lb2)
    x_rest(a, 's37', None, 8, 20)
    a.label(lb2)
    a.wqg = wq_groups(a)
    emit_groups(a, a.wqg[:WQ_AHEAD])
    a.label(lb)
    a.vm = []
    lq = a.newlabel('KV_skip')
    a('s_cmp_eq_u32 %s, 1' % sW); a('s_cbranch_scc0 %s' % lq)
    lc = a.newlabel('KV_cs')
    a('s_cmp_eq_u32 %s, 0' % sP); a('s_cbranch_scc0 %s' % lc)
    csk_reduce0(a)
    a.label(lc)
    kv_epilogue3(a)
    a.label(lq)
    G.stamp(a, 'kv_stores')
    lq1, lq2 = a.newlabel('QP_l1'), a.newlabel('QP_go')
    a('s_cmp_eq_u32 %s, 0' % sP); a('s_cbranch_scc0 %s' % lq1)
    stage0_q(a)
    a('s_waitcnt vmcnt(6)')
    ls = a.newlabel('QP_st0')
    a('s_cmp_eq_u32 %s, 1' % sW); a('s_cbranch_scc1 %s' % ls)
    slot_stats(a)
    a.label(ls)
    a('s_waitcnt lgkmcnt(0)')
    a('s_barrier')
    G.stamp(a, 'q_go')
    a.vm = []
    q_proj(a, False)
    a('s_branch %s' % lq2)
    a.label(lq1)
    lw = a.newlabel('QP_w1'); lw2 = a.newlabel('QP_w2')
    a('s_cmp_eq_u32 %s, 1' % sW); a('s_cbranch_scc1 %s' % lw)
    a('s_waitcnt vmcnt(%d)' % WQ_AHEAD)
    slot_stats(a)
    a.label(lw)
    a('s_waitcnt lgkmcnt(0)')
    a('s_barrier')
    a('s_cmp_eq_u32 %s, 1' % sW); a('s_cbranch_scc0 %s' % lw2)
    a('s_waitcnt vmcnt(0)')
    a.label(lw2)
    kv_flag(a)
    G.stamp(a, 'q_go')
    a.vm = [('wq', f) for f in range(WQ_AHEAD)]
    q_proj(a, True)
    a.label(lq2)

def stats_finish(a, S, T):
    xsum_g(a, S, T); xsum_g(a, S + 1, T + 1)
    a('v_mul_f32 v%d, %s, v%d' % (S, f2b(1.0 / 640), S)); a('v_mul_f32 v%d, %s, v%d' % (S + 1, f2b(1.0 / 640), S + 1))
    a('v_fma_f32 v%d, -v%d, v%d, v%d' % (S + 1, S, S, S + 1)); a('v_max_f32 v%d, 0, v%d' % (S + 1, S + 1)); a('v_add_f32 v%d, %s, v%d' % (S + 1, f2b(1e-5), S + 1))
    a('v_rsq_f32 v%d, v%d' % (T, S + 1)); a('v_mul_f32 v%d, v%d, v%d' % (T + 1, S, T)); a('v_sub_f32 v%d, 0, v%d' % (T + 1, T + 1))

def qst_write(a, T, rreg):
    a('s_add_u32 s40, s50, %s' % rreg); a('s_and_b32 s40, s40, 3'); a('s_lshl_b32 s40, s40, 7'); a('s_add_u32 s40, s40, %d' % QST)
    a('v_lshlrev_b32 v10, 3, %s' % vROW); a('v_add_u32 v10, s40, v10')
    a('s_mov_b64 exec, 0xffff'); a('ds_write_b64 v10, %s' % V(T, 2)); a('s_mov_b64 exec, -1')

def slot_stats(a):
    a('s_mul_i32 s40, s37, %d' % XSLOT); a('v_add_u32 v9, s40, %s' % vL16)
    a('v_mov_b32 v%d, 0' % SS); a('v_mov_b32 v%d, 0' % (SS + 1))
    B = 64
    for s in range(10): a('ds_read_b128 %s, v9 offset:%d' % (V(B + 4 * s), 1024 * s), tag=s)
    for s in range(20):
        a.wait_lg(s)
        b = B + 4 * (s % 10)
        for r in range(4):
            dot(a, SS, b + r, ONES); dot(a, SS + 1, b + r, 'v%d' % (b + r))
        if s + 10 < 20: a('ds_read_b128 %s, v9 offset:%d' % (V(b), 1024 * (s + 10)), tag=s + 10)
    stats_finish(a, SS, SS + 2)
    qst_write(a, SS + 2, 's37')
    a.wait_lg0()

def kv_epilogue3(a):
    a('v_add_u32 v9, %d, %s' % (RED, vL16))
    for w in range(4):
        for T in range(2): a('ds_read_b128 %s, v9 offset:%d' % (V(64 + 8 * w + 4 * T), 2048 * w + 1024 * T))
    a('v_lshlrev_b32 v10, 3, %s' % vLANE); a('v_add_u32 v10, %d, v10' % REDS)
    for w in range(4): a('ds_read_b64 %s, v10 offset:%d' % (V(96 + 2 * w, 2), 512 * w))
    sel_layer(a, 's44', L.KV_[0], L.KV_[1])
    a('s_lshl_b32 s40, %s, 1' % sC); a('s_lshr_b32 s41, s50, 1'); a('s_add_u32 s40, s40, s41'); a('s_mul_i32 s40, s40, %d' % L.KVREC); a('s_add_u32 s44, s44, s40')
    a.wait_lg0()
    for k in range(2):
        a('v_add_f32 v%d, v%d, v%d' % (96 + k, 96 + k, 98 + k)); a('v_add_f32 v%d, v%d, v%d' % (100 + k, 100 + k, 102 + k))
        a('v_add_f32 v%d, v%d, v%d' % (96 + k, 96 + k, 100 + k))
    for r in range(8):
        a('v_add_f32 v%d, v%d, v%d' % (64 + r, 64 + r, 72 + r)); a('v_add_f32 v%d, v%d, v%d' % (80 + r, 80 + r, 88 + r))
        a('v_add_f32 v%d, v%d, v%d' % (64 + r, 64 + r, 80 + r))
    stats_finish(a, 96, 98)
    qst_write(a, 98, '0')
    lv, le = a.newlabel('KVE_V'), a.newlabel('KVE_end')
    a('s_cmp_eq_u32 s49, 0'); a('s_cbranch_scc0 %s' % lv)
    a('s_and_b32 s40, s50, 1'); a('s_lshl_b32 s40, s40, 4')
    a('v_add_u32 v10, s40, %s' % vROW)
    a('v_and_b32 v11, 1, %s' % vG); a('v_lshlrev_b32 v11, 5, v11'); a('v_add_u32 v11, v11, v10'); a('v_lshlrev_b32 v11, 4, v11')
    a('v_lshrrev_b32 v12, 1, %s' % vG); a('v_lshlrev_b32 v12, 3, v12'); a('v_add_u32 v11, v11, v12')
    a('v_lshlrev_b32 v14, 5, %s' % vG); a('v_add_u32 v14, v14, v10'); a('v_lshlrev_b32 v14, 3, v14')
    for r in range(8):
        a('v_mul_f32 v%d, v99, v%d' % (72 + r, CSK + r))
        a('v_fma_f32 v%d, v%d, v98, v%d' % (64 + r, 64 + r, 72 + r))
    for t in range(4): a('v_cvt_pk_bf16_f32 v%d, v%d, v%d' % (80 + t, 64 + 2 * t, 65 + 2 * t))
    a('buffer_store_dwordx2 v[80:81], v11, %s, s44 offen sc1' % S_WS)
    a('v_cmp_eq_u32 vcc, 0, %s' % vG)
    a('v_mov_b32 v12, 0x3f803f80'); a('v_mov_b32 v13, 0x00003f80')
    a('v_cndmask_b32 v82, v12, v82, vcc'); a('v_cndmask_b32 v83, v13, v83, vcc')
    a('s_mov_b32 exec_hi, 0')
    a('buffer_store_dwordx2 v[82:83], v14, %s, s44 offen offset:%d sc1' % (S_WS, L.KV_K2))
    a('s_mov_b64 exec, -1')
    a('v_mul_f32 v72, v68, v68')
    for r in range(5, 8): a('v_fma_f32 v72, v%d, v%d, v72' % (64 + r, 64 + r))
    a('v_cndmask_b32 v72, 0, v72, vcc')
    for r in range(4): a('v_fma_f32 v72, v%d, v%d, v72' % (64 + r, 64 + r))
    xsum_g(a, 72, 73)
    max_row16(a, 72)
    sel_layer(a, 's45', L.KN_[0], L.KN_[1])
    a('s_lshl_b32 s40, %s, 2' % sC); a('s_add_u32 s40, s40, s50'); a('s_lshl_b32 s40, s40, 2'); a('s_add_u32 s45, s45, s40')
    a('v_mov_b32 v11, 0')
    a('s_mov_b64 exec, 1')
    a('buffer_store_dword v72, v11, %s, s45 offen sc1' % S_WS)
    a('s_mov_b64 exec, -1')
    a('s_branch %s' % le)
    a.label(lv)
    a('v_lshlrev_b32 v10, 3, %s' % vROW); a('v_add_u32 v10, %d, v10' % KVST)
    a('s_mov_b64 exec, 0xffff'); a('ds_write_b64 v10, v[98:99]'); a('s_mov_b64 exec, -1')
    a('v_lshlrev_b32 v10, 5, %s' % vG); a('v_add_u32 v10, %d, v10' % KVST)
    a('s_and_b32 s40, s50, 1'); a('s_mul_i32 s40, s40, %d' % (L.KV_V1 - L.KV_V0)); a('s_add_u32 s40, s40, %d' % L.KV_V0); a('s_add_u32 s44, s44, s40')
    a('v_and_b32 v11, 1, %s' % vG); a('v_mul_u32_u24 v11, 21, v11'); a('v_add_u32 v11, v11, %s' % vROW); a('v_lshlrev_b32 v11, 4, v11')
    a('v_lshrrev_b32 v12, 1, %s' % vG); a('v_lshlrev_b32 v12, 3, v12'); a('v_add_u32 v11, v11, v12')
    a('s_waitcnt lgkmcnt(0)')
    a('ds_read_b128 v[88:91], v10'); a('ds_read_b128 v[92:95], v10 offset:16')
    a('s_waitcnt lgkmcnt(0)')
    for T in range(2):
        for r in range(4):
            a('v_mul_f32 v%d, v%d, v%d' % (72 + (r & 1), 89 + 2 * r, CSK + 4 * T))
            a('v_fma_f32 v%d, v%d, v%d, v%d' % (64 + 4 * T + r, 64 + 4 * T + r, 88 + 2 * r, 72 + (r & 1)))
    for t in range(4): a('v_cvt_pk_bf16_f32 v%d, v%d, v%d' % (80 + t, 64 + 2 * t, 65 + 2 * t))
    a('buffer_store_dwordx2 v[80:81], v11, %s, s44 offen sc1' % S_WS)
    a('v_cmp_eq_u32 vcc, 4, %s' % vROW)
    a('v_mov_b32 v12, 0x3f803f80')
    a('v_cndmask_b32 v82, v82, v12, vcc'); a('v_cndmask_b32 v83, v83, v12, vcc')
    a('v_cmp_ge_u32 vcc, 4, %s' % vROW)
    a('s_and_saveexec_b64 s[46:47], vcc')
    a('buffer_store_dwordx2 v[82:83], v11, %s, s44 offen offset:256 sc1' % S_WS)
    a('s_mov_b64 exec, s[46:47]')
    a.label(le)
    a.lg = []; a.vm = []

AQ, BQ, XR3, SSA, SSB = 64, 80, 16, 40, 41
def q_proj(a, stream):
    a.comment('---- Q projection: wave = head, two 32-row tiles; row sums come from the ones row, sums of squares from dot products')
    a('v_lshrrev_b32 v9, 4, %s' % vLANE); a('v_and_b32 v9, 1, v9')
    a('v_lshrrev_b32 v12, 5, %s' % vLANE); a('v_lshlrev_b32 v12, 4, v12'); a('v_add_u32 v12, v12, %s' % vROW); a('v_lshlrev_b32 v12, 4, v12')
    a('s_sub_u32 s40, 4, s50')
    for reg, add in (('v10', 2), ('v9', 0)):
        a('v_add_u32 v11, s40, v9'); a('v_add_u32 v11, %d, v11' % add); a('v_and_b32 v11, 3, v11'); a('v_mul_u32_u24 v11, %d, v11' % XSLOT)
        a('v_add_u32 %s, v11, v12' % reg)
    def rd(s16):
        off = (s16 >> 1) * 1024 + (s16 & 1) * 512
        b = XR3 + 8 * (s16 % 3)
        return ['ds_read_b128 %s, v9 offset:%d' % (V(b), off), 'ds_read_b128 %s, v10 offset:%d' % (V(b + 4), off)]
    for s in range(2):
        for t in rd(s): a(t, tag=s)
    for s16 in range(40):
        if stream and s16 % 2 == 0: a.wait_vm_opt(('wq', s16 + 1))
        a.wait_lg(s16)
        b = XR3 + 8 * (s16 % 3)
        nxt = rd(s16 + 2) if s16 + 2 < 40 else []
        for k, (ACC, ss) in enumerate(((AQ, SSA), (BQ, SSB))):
            a('v_mfma_f32_32x32x16_bf16 %s, %s, %s, %s' % (V(ACC, 16), A(4 * s16), V(b + 4 * k), '0' if s16 == 0 else V(ACC, 16)))
            if nxt: a(nxt[k], tag=s16 + 2)
            if stream and k == 1 and s16 + WQ_AHEAD < 40:
                for t, tg in a.wqg[s16 + WQ_AHEAD]: a.I(t, ('wq', s16 + WQ_AHEAD) if tg else None)
    a.lg = []

def q_epilogue(a):
    a('v_and_b32 v16, 31, %s' % vLANE); a('v_lshlrev_b32 v16, 3, v16'); a('v_add_u32 v16, %d, v16' % QST)
    a('ds_read_b64 v[18:19], v16'); a('ds_read_b64 v[20:21], v16 offset:256')
    a('s_waitcnt lgkmcnt(0)')
    for r in range(18, 22): a('v_mul_f32 v%d, %s, v%d' % (r, f2b(QSCALE), r))
    a('v_cmp_gt_u32 vcc, 32, %s' % vLANE)
    for (ACC, st, q1, q2, nrm) in ((AQ, 18, QA1, QA2, 116), (BQ, 20, QB1, QB2, 117)):
        a('v_cndmask_b32 v24, 0, v%d, vcc' % st); a('v_cndmask_b32 v25, 0, v%d, vcc' % (st + 1))
        for r in range(12):
            rs, nm = (st, st + 1) if r < 8 else (24, 25)
            a('v_mul_f32 v%d, v%d, v%d' % (22 + (r & 1), nm, CSQ + r))
            a('v_fma_f32 v%d, v%d, v%d, v%d' % (ACC + r, ACC + r, rs, 22 + (r & 1)))
        for r in range(8, 12): a('v_cndmask_b32 v%d, 0, v%d, vcc' % (ACC + r, ACC + r))
        a('v_mul_f32 v%d, v%d, v%d' % (nrm, ACC, ACC))
        for r in range(1, 12): a('v_fma_f32 v%d, v%d, v%d, v%d' % (nrm, ACC + r, ACC + r, nrm))
        for t in range(4): a('v_cvt_pk_bf16_f32 v%d, v%d, v%d' % (q1 + t, ACC + 2 * t, ACC + 2 * t + 1))
        for t in range(2): a('v_cvt_pk_bf16_f32 v%d, v%d, v%d' % (q2 + t, ACC + 8 + 2 * t, ACC + 9 + 2 * t))
    for nrm in (116, 117):
        a('v_mov_b32 v118, v%d' % nrm)
        a('v_permlane32_swap_b32 v%d, v118' % nrm)
        a('v_add_f32 v%d, v%d, v118' % (nrm, nrm))
    a('v_max_f32 v116, v116, v117')
    max_wave(a, 116, 118)
    a('v_readfirstlane_b32 s52, v116')

PF0 = 16
def all_flags_spin(a, name, base, target_code):
    target_code()
    a('s_mov_b32 s40, %d' % base)
    def nr():
        a('v_min_u32 v8, v8, v9'); a('v_min_u32 v10, v10, v11'); a('v_min_u32 v8, v8, v10'); a('v_cmp_gt_u32 vcc, s43, v8')
    def ld():
        a('buffer_load_dwordx4 v[8:11], %s, %s, s40 offen sc1' % (vL16, S_WS)); a.vm.pop()
    G.spin(a, name, ld, nr)

def attention(a):
    a.comment('==== attention')
    lp = a.newlabel('ATT_l0')
    a('s_cmp_eq_u32 %s, 0' % sP); a('s_cbranch_scc0 %s' % lp)
    a('s_waitcnt vmcnt(0)')
    a('s_barrier')
    prep_process(a)
    publish_tiled_weights(a)
    a.label(lp)
    a.vm = []
    lab, lk = a.newlabel('KVW'), a.newlabel('KVW_l1')
    a('s_cmp_eq_u32 %s, 0' % sW); a('s_cbranch_scc0 %s' % lab)
    a('s_cmp_eq_u32 %s, 0' % sP); a('s_cbranch_scc0 %s' % lk)
    a('v_lshlrev_b32 v10, 2, %s' % vLANE)
    def ldd():
        a('buffer_load_dword v9, v10, %s, 0 offen sc1' % S_DBG); a.vm.pop()
    def nrd():
        a('v_and_b32 v9, 0x01010101, v9'); a('v_cmp_ne_u32 vcc, 0x01010101, v9')
    G.spin(a, 'DBGP', ldd, nrd)
    a.label(lk)
    all_flags_spin(a, 'KVP', L.FLAGKV, lambda: a('s_add_u32 s43, %s, 1' % sP))
    a.label(lab)
    a('s_barrier')
    G.stamp(a, 'kv_allready')
    sel_layer(a, 's53', L.KV_[0], L.KV_[1])
    a('s_mul_i32 s54, %s, 3072' % sW)
    a('s_add_u32 s55, s53, s54')
    def chunk_group(c):
        g = [('s_add_u32 m0, s54, %d' % (RING + (c % 4) * CH), None)]
        for i in range(3):
            g.append(('buffer_load_dwordx4 %s, %s, s55 offen offset:%d sc1 lds' % (vL16, S_WS, i * 1024), ('kv', c)))
        g.append(('s_add_u32 s55, s55, %d' % CH, None))
        return g
    for c in range(3): emit_groups(a, [chunk_group(c)])
    sel_layer(a, 's45', L.KN_[0], L.KN_[1])
    a('v_lshlrev_b32 v8, 3, %s' % vLANE)
    a('s_lshl_b32 s40, %s, 5' % sC); a('s_add_u32 s40, s40, %d' % L.XCCW)
    a('v_and_b32 v9, 7, %s' % vLANE); a('v_lshlrev_b32 v9, 2, v9')
    a('buffer_load_dword v227, v9, %s, s40 offen sc1' % S_WS, tag='kn')
    a('buffer_load_dwordx2 v[10:11], v8, %s, s45 offen sc1' % S_WS, tag='kn')
    q_epilogue(a)
    a('v_add_u32 %s, %d, %s' % (vK1, RING, vL16))
    a('v_lshlrev_b32 %s, 3, %s' % (vK2, vLANE)); a('v_add_u32 %s, %d, %s' % (vK2, RING + L.KV_K2, vK2))
    a('v_lshrrev_b32 v8, 5, %s' % vLANE); a('v_mul_u32_u24 v8, 21, v8'); a('v_and_b32 v9, 31, %s' % vLANE); a('v_add_u32 v8, v8, v9')
    a('v_lshlrev_b32 v8, 4, v8'); a('v_add_u32 %s, %d, v8' % (vV, RING + L.KV_V0))
    for r in range(16): a('v_mov_b32 v%d, 0' % (OA + r)); a('v_mov_b32 v%d, 0' % (OB + r))
    for r in range(8): a('v_mov_b32 v%d, 0' % (PB + r))
    for r in range(4): a('v_mov_b32 v%d, 0' % (KVB[1] + 12 + r))
    a('s_mul_i32 s59, %s, %d' % (sJ, 100 * 1024)); a('s_mul_i32 s60, %s, %d' % (sW, 25 * 1024)); a('s_add_u32 s59, s59, s60'); a('s_add_u32 s59, s59, %d' % L.WO_T)
    a('s_lshl_b32 s61, %s, 2' % sJ); a('s_add_u32 s61, s61, %s' % sW); a('s_mul_i32 s61, s61, %d' % (60 * 1024)); a('s_add_u32 s61, s61, %d' % L.W1_T)
    a('s_mul_i32 s40, %s, 12' % sJ); a('s_lshl_b32 s41, %s, 1' % sW); a('s_add_u32 s66, s40, s41'); a('s_lshl_b32 s66, s66, 6'); a('s_add_u32 s66, s66, %d' % L.B1P)
    a('s_add_u32 s67, s40, %s' % sW); a('s_add_u32 s67, s67, 8'); a('s_lshl_b32 s67, s67, 6'); a('s_add_u32 s67, s67, %d' % L.B1P)
    a('v_lshlrev_b32 v252, 4, %s' % vG)
    pf = seq_loads(25, None, 's59', 'pf', lds_base=0, lds_reg='s60', always_m0=True) + seq_loads(60, lambda f: A(4 * f), 's61', 'pf')
    pf += [[('buffer_load_dwordx4 %s, v252, %s, s66 offen sc1' % (V(B1R), S_WS), 'pf')],
           [('buffer_load_dwordx4 %s, v252, %s, s66 offen offset:64 sc1' % (V(B1R + 4), S_WS), 'pf')],
           [('buffer_load_dwordx4 %s, v252, %s, s67 offen sc1' % (V(B1R + 8), S_WS), 'pf')]]
    a.wait_vm('kn')
    ld = a.newlabel('DF')
    a('s_cmp_eq_u32 %s, 0' % sP); a('s_cbranch_scc0 %s' % ld)
    a('v_cmp_ne_u32 vcc, s35, v227')
    a('s_cmp_eq_u64 vcc, 0'); a('s_cselect_b32 %s, %d, 0' % (sFAST, 0 if P2.NOFAST else 1))
    a('s_cmp_eq_u32 %s, 0' % sFAST); a('s_cselect_b64 s[40:41], 0, -1')
    a('v_mov_b32 v8, 0x40000000')
    a('v_cndmask_b32 %s, v8, %s, s[40:41]' % (vOFF_F, vL16))
    a('v_cndmask_b32 %s, %s, v8, s[40:41]' % (vOFF_S, vL16))
    a.label(ld)
    a('v_max_f32 v10, v10, v11')
    max_wave(a, 10, 11)
    a('v_mul_f32 v10, s52, v10')
    a('v_cmp_nge_f32 vcc, %s, v10' % f2b(FAST_T2))
    lfast = a.newlabel('ATT_fast')
    pend = list(a.vm)
    a('s_cmp_eq_u64 vcc, 0'); a('s_cbranch_scc1 %s' % lfast)
    true_max_prepass(a)
    a.label(lfast)
    a.vm = pend
    a('s_barrier')
    lpf = a.newlabel('PFLAG')
    a('s_cmp_eq_u32 %s, 0' % sP); a('s_cbranch_scc0 %s' % lpf)
    a('s_cmp_eq_u32 %s, 0' % sW); a('s_cbranch_scc0 %s' % lpf)
    a('s_lshl_b32 s40, %s, 2' % sROLE); a('s_add_u32 s40, s40, %d' % L.PREPF)
    a('v_mov_b32 v8, 0'); a('v_mov_b32 v9, 1')
    a('s_mov_b64 exec, 1')
    a('buffer_store_dword v9, v8, %s, s40 offen sc1' % S_WS); a.vm.pop()
    a('s_mov_b64 exec, -1')
    a.label(lpf)
    def ldK(t, buf):
        return ['ds_read_b128 %s, %s offset:%d' % (V(KVB[buf]), vK1, kv_off(t)), 'ds_read_b64 %s, %s offset:%d' % (V(KVB[buf] + 4, 2), vK2, kv_off(t))]
    def ldV(t, buf):
        return ['ds_read_b128 %s, %s offset:%d' % (V(KVB[buf] + 8), vV, kv_off(t)), 'ds_read_b128 %s, %s offset:%d' % (V(KVB[buf] + 12), vV, kv_off(t) + L.KV_V1 - L.KV_V0)]
    for t in ldK(0, 0) + ldK(1, 1) + ldV(0, 0): a(t)
    a.wait_lg0()
    a(mf16(SA[0], KVB[0], QA1, '0')); a(mf16(SB[0], KVB[0], QB1, '0'))
    a(mf8(SA[0], KVB[0] + 4, QA2, SA[0])); a(mf8(SB[0], KVB[0] + 4, QB2, SB[0]))
    G.stamp(a, 'att_loop')
    pfi = 0
    NT = 64
    for t in range(NT):
        par = t & 1
        cur, nxt = KVB[par], KVB[1 - par]
        sa, sb, san, sbn = SA[par], SB[par], SA[1 - par], SB[1 - par]
        last = t == NT - 1
        m = [mf16(san, nxt, QA1, '0'), mf8(san, nxt + 4, QA2, san), mf16(OB, nxt + 12, PB + 4, OB), mf16(OA, cur + 8, PA, OA),
             mf16(sbn, nxt, QB1, '0'), mf8(sbn, nxt + 4, QB2, sbn), mf16(OA, cur + 12, PA + 4, OA), mf16(OB, cur + 8, PB, OB)]
        if last: m[0] = m[1] = m[4] = m[5] = None
        g = [att_gap(sa, PA, q) for q in range(4)] + [att_gap(sb, PB, q) for q in range(4)]
        k = ldK(t + 2, par) if t + 2 < NT else [None, None]
        v = ldV(t + 1, 1 - par) if t + 1 < NT else [None, None]
        post = [[k[0]], [k[1]], [], [v[0]], [v[1]], [], [], ['s_waitcnt lgkmcnt(0)']]
        post = [[(x, None) for x in q if x] for q in post]
        c = t // 4
        barrier_here = t % 4 == 2 and c + 1 < 16
        if barrier_here:
            if c + 3 < 16:
                gq = chunk_group(c + 3)
                post[2] = gq[0:2]; post[5] = gq[2:3]; post[6] = gq[3:5]
        elif t >= PF0:
            for slot in (2, 5, 6):
                if pfi < len(pf): post[slot] = post[slot] + pf[pfi]; pfi += 1
        if barrier_here:
            a.wait_vm_opt(('kv', c + 1))
            if t == PF0 - 2:
                lw = a.newlabel('PREPW')
                pend = list(a.vm)
                a('s_cmp_eq_u32 %s, 0' % sP); a('s_cbranch_scc0 %s' % lw)
                a('s_cmp_eq_u32 %s, 0' % sW); a('s_cbranch_scc0 %s' % lw)
                all_flags_spin(a, 'PRP', L.PREPF, lambda: a('s_mov_b32 s43, 1'))
                a.label(lw)
                a.vm = pend
            a('s_barrier')
        for kk in range(8):
            if m[kk]: a.I(m[kk])
            for x, tag in post[kk]: a.I(x, tag)
            for x in g[kk]: a.I(x)
    assert pfi == len(pf), (pfi, len(pf))
    a.lg = []
    a(mf16(OB, KVB[1] + 12, PB + 4, OB))
    G.stamp(a, 'att_loopend')
    att_epilogue(a)

def res_epilogue(a, ACC, tiled_base_reg, stats_base, final):
    PKD = 48
    if not final:
        a('s_lshl_b32 s40, %s, 2' % sC); a('s_add_u32 s40, s40, %s' % sW); a('s_mul_i32 s40, s40, 20480'); a('s_add_u32 s42, s40, %s' % tiled_base_reg)
        a('s_lshl_b32 s40, %s, 11' % sJ); a('s_add_u32 s40, s40, s42')
        G.res_single_off(a, 's44', 1024); a('s_add_u32 s44, s44, s42')
        voff, srd, step = vL16, S_WS, 1024
    else:
        G.rowmajor_voff(a, 'v8', 'v9')
        a('s_lshl_b32 s40, %s, 7' % sJ)
        G.res_single_off(a, 's44', 64)
        voff, srd, step = 'v8', S_OUT, 64
    for t in range(10): a('v_cvt_pk_bf16_f32 v%d, v%d, v%d' % (PKD + t, ACC + 2 * t, ACC + 2 * t + 1))
    items = ['buffer_store_dwordx4 %s, %s, %s, s40 offen' % (V(PKD), voff, srd),
             'buffer_store_dwordx4 %s, %s, %s, s40 offen offset:%d' % (V(PKD + 4), voff, srd, step),
             'buffer_store_dwordx2 %s, %s, %s, s44 offen' % (V(PKD + 8, 2), voff, srd)]
    if final:
        for t in items: a(t, tag='out')
        return
    handoff_stores(a, items)
    if stats_base is not None:
        G.stats_regs(a, ACC, 60)
        st = G.store_stats(a, 60, stats_base, defer=True)
        handoff_stores(a, [st])
    for t in range(10): a('v_accvgpr_write_b32 a%d, v%d' % (RES + t, PKD + t))

def wo(a):
    a.comment('==== output projection + residual')
    ACT, ACC, WF = 96, 16, 36
    G.unpack_res(a, ACC)
    sel_layer(a, 's46', L.O_[0], L.O_[1])
    a('s_lshl_b32 s40, %s, 2' % sC); a('s_add_u32 s40, s40, %s' % sW); a('s_mul_i32 s40, s40, 20480'); a('s_add_u32 s46, s46, s40')
    lds_bases(a)
    def rd(s):
        b = WF + 20 * (s % 3)
        out = []
        for t in range(5):
            r, o = lds_pair((s * 5 + t) * 1024)
            out.append('ds_read_b128 %s, %s offset:%d' % (V(b + 4 * t), r, o))
        return out
    wait_cluster(a, lambda: flagval(1)(a))
    lds_bases(a)
    G.stamp(a, 'wo_go')
    acts = seq_loads(20, lambda f: V(ACT + 4 * f), 's46', None)
    def issue(s):
        for t, tag in acts[s]: a.I(t, ('act', s) if 'buffer' in t else None)
    AH = 8
    for s in range(AH): issue(s)
    def hook(s):
        if s >= 1 and s - 1 + AH < 20: issue(s - 1 + AH)
    waits = {0: 0, 1: 1}
    waits.update({s: min(s + 1, 19) for s in range(2, 20, 2)})
    gemm5(a, 20, rd, lambda s: V(ACT + 4 * s), ACC, WF, waits, hook)
    G.stamp(a, 'wo_mfma')
    sel_layer(a, 's47', L.X1_[0], L.X1_[1]); sel_layer(a, 's48', L.ST1_[0], L.ST1_[1])
    res_epilogue(a, ACC, 's47', 's48', False)
    signal(a, 'out', lambda: flagval(2)(a))

def w2_quads(a, s0, n, tag, w0=0, sreg='s62', lreg='s63'):
    nq = 5 * n; nw = 4 - w0; nu = (nq + 3) // 4; rounds = (nu + nw - 1) // nw
    base = w2_lds(s0)
    assert all(w2_lds(s0 + i) == base + i * 5120 for i in range(n))
    a('s_sub_u32 %s, %s, %d' % (lreg, sW, w0)); a('s_lshl_b32 %s, %s, 12' % (lreg, lreg))
    a('s_mul_i32 %s, %s, %d' % (sreg, sJ, 240 * 1024)); a('s_add_u32 %s, %s, %d' % (sreg, sreg, L.W2_T + s0 * 5120))
    out = []
    for i in range(rounds):
        off = i * nw * 4096
        if i * nw + nw - 1 < nu or base + (i * nw + nw) * 4096 > 163840 and False:
            head = [('s_add_u32 s40, %s, %d' % (lreg, off), None)]
        else:
            head = [('s_add_u32 s40, %s, %d' % (lreg, off), None), ('s_min_u32 s40, s40, %d' % ((nu - 1) * 4096), None)]
        head += [('s_add_u32 m0, s40, %d' % base, None), ('s_add_u32 s41, s40, %s' % sreg, None)]
        loads = [('buffer_load_dwordx4 %s, %s, s41 offen offset:%d sc1 lds' % (vL16, S_WS, k * 1024), tag) for k in range(4)]
        out.append(head + loads[:1])
        for x in loads[1:]: out.append([x])
    return out

def signal_burst(a, out_tag, val_code, groups_fn, first):
    l0, l1, l2 = a.newlabel('SB0'), a.newlabel('SB1'), a.newlabel('SB2')
    a('s_barrier')
    a('s_cmp_eq_u32 %s, 0' % sW); a('s_cbranch_scc1 %s' % l0)
    groups = groups_fn()
    n0 = 0; k = 0
    while n0 < first:
        for x in groups[k]: a.I(x[0], x[1])
        n0 += sum(1 for x in groups[k] if x[1]); k += 1
    a('s_waitcnt vmcnt(%d)' % n0)
    a('s_barrier')
    emit_groups(a, groups[k:])
    a('s_branch %s' % l1)
    a.label(l0)
    a('s_waitcnt vmcnt(0)')
    a('s_barrier')
    val_code()
    P2.flag_store(a)
    a.label(l1)
    a.vm = []

def capture(a, fn):
    n = len(a.items); vm, lg = list(a.vm), list(a.lg)
    fn()
    items = a.items[n:]; del a.items[n:]
    a.vm, a.lg = vm, lg
    return [it.text for it in items]

def weave3(a, main, valu, mem, frac=1.0, start=0.0):
    total = sum(item_cost(f) for f in valu)
    n = len(main); done = 0; fi = 0; mi = 0
    free = [i for i, m in enumerate(main) if m[2]]
    place = {}
    if mem:
        for k, g in enumerate(mem): place.setdefault(free[min(int(k * len(free) / len(mem)), len(free) - 1)], []).append(g)
    for i, (mf, post, ok) in enumerate(main):
        a.I(mf)
        for q in post:
            if callable(q): q()
            else: a.I(q[0], q[1])
        for g in place.get(i, []):
            for x in g: a.I(x[0], x[1])
        target = total * max(0.0, (i + 1) / n - start) / (frac - start)
        while fi < len(valu) and done < target:
            f = valu[fi]; fi += 1
            if callable(f): f(); done += 4
            else:
                a.I(f); done += item_cost(f)
    while fi < len(valu):
        f = valu[fi]; fi += 1
        f() if callable(f) else a.I(f)

def ffn1(a):
    a.comment('==== FFN up projection + GELU')
    sel_layer(a, 's47', L.X1_[0], L.X1_[1]); sel_layer(a, 's48', L.ST1_[0], L.ST1_[1])
    a('s_lshl_b32 s40, %s, 2' % sC); a('s_mul_i32 s40, s40, 20480'); a('s_mul_i32 s41, %s, 5120' % sW); a('s_add_u32 s40, s40, s41'); a('s_add_u32 s47, s47, s40')
    lc = a.newlabel('F1_cs')
    a('s_cmp_eq_u32 %s, 0' % sP); a('s_cbranch_scc0 %s' % lc)
    for r in range(12, 16): a('v_mov_b32 v%d, 0x3f803f80' % r)
    for s in range(20):
        for t in range(3): a(mf4(V(CS1R + 4 * t), A(4 * (3 * s + t)), 'v[12:15]', '0' if s == 0 else V(CS1R + 4 * t)))
    a.label(lc)
    wait_cluster(a, lambda: flagval(2)(a))
    G.stamp(a, 'ffn1_go')
    a('s_mul_i32 s75, %s, 5120' % sW)
    SR = 64
    def xgroups(i):
        ld = lambda o, r: ('buffer_load_dwordx4 %s, %s, %s offen offset:%d sc1 lds' % (vL16, S_WS, r, o), ('x', i))
        return [[('s_add_u32 m0, s75, %d' % (i * 20480), None), ('s_add_u32 s76, s47, 4096', None), ld(0, 's47')],
                [ld(1024, 's47')], [ld(2048, 's47')], [ld(3072, 's47')],
                [('s_add_u32 m0, s75, %d' % (i * 20480 + 4096), None), ('s_add_u32 s47, s47, 20480', None), ld(0, 's76')]]
    emit_groups(a, xgroups(0))
    row_stats_issue(a, 's48', SR)
    emit_groups(a, xgroups(1) + xgroups(2) + xgroups(3))
    xrest = []
    sel_layer(a, 's44', L.H_[0], L.H_[1])
    a('s_lshl_b32 s40, %s, 2' % sC); a('s_mul_i32 s40, s40, 48'); a('s_mul_i32 s41, %s, 6' % sJ); a('s_add_u32 s40, s40, s41'); a('s_lshl_b32 s40, s40, 10'); a('s_add_u32 s44, s44, s40')
    a('s_lshr_b32 s45, %s, 1' % sW); a('s_add_u32 s45, s45, 4'); a('s_lshl_b32 s45, s45, 10'); a('s_and_b32 s41, %s, 1' % sW); a('s_lshl_b32 s41, s41, 3'); a('s_add_u32 s45, s45, s41'); a('s_add_u32 s45, s45, s44')
    a('s_lshl_b32 s41, %s, 10' % sW); a('s_add_u32 s44, s44, s41')
    a('v_lshlrev_b32 v10, 3, %s' % vROW); a('v_add_u32 v10, %d, v10' % LDS_STATS)
    a('v_mov_b32 v14, %s' % f2b(G2)); a('v_mov_b32 v15, %s' % f2b(G1))
    ACCS = (16, 28); STS = (12, 40); XR = 176; PK = 48; T0 = 56
    a('v_mov_b32 v8, %s' % vL16); a('v_add_u32 v9, 0x10000, %s' % vL16)
    w2a = w2_quads(a, 0, 15, 'w2a')
    pfk = kv_weight_groups(a)
    a('s_lshl_b32 s68, %s, 8' % sJ); a('s_add_u32 s68, s68, %d' % L.B2P); a('s_lshl_b32 s69, %s, 6' % sJ); a('s_add_u32 s69, s69, %d' % (L.B2P + 32 * 64))
    a('v_lshlrev_b32 v11, 4, %s' % vG)
    b2g = [[('buffer_load_dwordx4 %s, v11, %s, s68 offen offset:%d sc1' % (V(B2R + 4 * t), S_WS, 64 * t), 'b2')] for t in range(4)]
    b2g += [[('buffer_load_dwordx4 %s, v11, %s, s69 offen sc1' % (V(B2R + 16), S_WS), 'b2')]]
    NXR = 8; LA = 6
    def rdx(i, s):
        o = (i * 20 + s) * 1024
        r, oo = ('v8', o) if o < 65536 else ('v9', o - 65536)
        return 'ds_read_b128 %s, %s offset:%d' % (V(XR + 4 * ((i * 20 + s) % NXR)), r, oo)
    def stores():
        return [[('buffer_store_dwordx4 %s, %s, %s, s44 offen' % (V(PK), vOFF_F, S_WS), 'out')],
                [('buffer_store_dwordx2 %s, %s, %s, s45 offen' % (V(PK + 4, 2), vOFF_F, S_WS), 'out')],
                [('buffer_store_dwordx4 %s, %s, %s, s44 offen sc1' % (V(PK), vOFF_S, S_WS), 'out')],
                [('buffer_store_dwordx2 %s, %s, %s, s45 offen sc1' % (V(PK + 4, 2), vOFF_S, S_WS), 'out'),
                 ('s_add_u32 s44, s44, %d' % (48 * 1024), None), ('s_add_u32 s45, s45, %d' % (48 * 1024), None)]]
    a.wait_vm(('x', 0))
    a('s_barrier')
    G.stamp(a, 'ffn1_loaded')
    for k in range(LA): a(rdx(0, k), tag=('x', 0, k))
    half = (len(w2a) // 8) * 4
    mems = {0: [], 1: w2a[:12], 2: w2a[12:] + b2g, 3: pfk}
    EXP = os.environ.get('EXP', '')
    if 'nomem' in EXP: mems = {0: [], 1: [], 2: [], 3: []}
    for i in range(4):
        ACC = ACCS[i & 1]
        if i == 1:
            a.wait_vm_opt(('x', 3)); a.wait_lg0(); a('s_barrier')
            if os.environ.get('FINE') == 'ffn1': G.stamp(a, 'f1_bar')
            for k in range(LA): a(rdx(1, k), tag=('x', 1, k))
            a('ds_read_b64 %s, v10 offset:%d' % (V(STS[0], 2), 0), tag=('st', 0))
        if i >= 1: a('ds_read_b64 %s, v10 offset:%d' % (V(STS[i & 1], 2), 128 * i), tag=('st', i))
        main = []
        for s in range(20):
            g = i * 20 + s + LA
            ni, ns = g // 20, g % 20
            rd_ok = ni < 4 and not (i == 0 and ni == 1)
            for t in range(3):
                post = []
                if t == 0 and rd_ok: post.append((rdx(ni, ns), ('x', ni, ns)))
                if t == 2 and s % 2 == 1 and s + 1 < 20: post.append((lambda tg: (lambda: a.wait_lg(tg) if tg in a.lg else None))(('x', i, min(s + 2, 19))))
                f = s * 3 + t
                main.append((mf4(V(ACC + 4 * t), A(4 * f), V(XR + 4 * ((i * 20 + s) % NXR)), '0' if s == 0 else V(ACC + 4 * t)), post, t == 1))
        if ('x', i, 1) in a.lg: a.wait_lg(('x', i, 1))
        if i == 0:
            def stats_code():
                a.vm = ['stats']; P2.row_stats_finish_nw(a, SR)
            txt = capture(a, stats_code)
            txt = [t.replace('v_pk_add_f32', 'PK') for t in txt]
            valu = [lambda: a.wait_vm_opt('stats')]
            import re
            k = 0
            while k < len(txt):
                t = txt[k]
                if t.startswith('PK'):
                    r = [int(x) for x in re.findall(r'v\[(\d+):', t)]
                    valu += ['v_add_f32 v%d, v%d, v%d' % (r[0], r[1], r[2]), 'v_add_f32 v%d, v%d, v%d' % (r[0] + 1, r[1] + 1, r[2] + 1)]
                elif t.startswith('s_mov_b64 exec, 0xffff'):
                    grp = txt[k:k + 3]; k += 2
                    valu.append((lambda g3: (lambda: [a.I(x, 'stw') for x in g3]))(grp))
                elif t.startswith('s_nop'): pass
                else: valu.append(t)
                k += 1
            weave3(a, main, valu, xrest, frac=0.95, start=0.4)
            if os.environ.get('FINE') == 'ffn1': G.stamp(a, 'f1_pass0')
        else:
            if ('st', i - 1) in a.lg: a.wait_lg(('st', i - 1))
            gs = gelu_stream(ACCS[(i - 1) & 1], CS1R, B1R, STS[(i - 1) & 1], PK, T0)
            if 'nogelu' in EXP: gs = []
            weave3(a, main, gs, mems[i], frac=0.9)
            for grp in stores():
                for x in grp:
                    if 'nost' in EXP and x[1]: continue
                    a.I(x[0], x[1])
            if os.environ.get('FINE') == 'ffn1': G.stamp(a, 'f1_pass%d' % i)
    if ('st', 3) in a.lg: a.wait_lg(('st', 3))
    for t in gelu_stream(ACCS[1], CS1R, B1R, STS[1], PK, T0): a(t)
    for grp in stores():
        for x in grp: a.I(x[0], x[1])
    a.lg = []
    G.stamp(a, 'ffn1_comp')
    signal_burst(a, 'out', lambda: flagval(3)(a), lambda: w2_quads(a, 15, 16, 'w2b', w0=1), 8)

def ffn2(a):
    a.comment('==== FFN down projection + residual')
    ACC, WF = 16, 40
    G.unpack_res(a, ACC)
    sel_layer(a, 's46', L.H_[0], L.H_[1])
    a('s_lshl_b32 s40, %s, 2' % sC); a('s_add_u32 s40, s40, %s' % sW); a('s_mul_i32 s40, s40, %d' % (48 * 1024)); a('s_add_u32 s46, s46, s40')
    for r in range(20): a('v_add_f32 v%d, v%d, v%d' % (ACC + r, ACC + r, B2R + r))
    a.vm = []
    wait_cluster(a, lambda: flagval(3)(a))
    G.stamp(a, 'ffn2_go')
    NR = 20; AB = 160
    def act_load(s):
        g = []
        if s % 4 == 0 and s > 0: g.append(('s_add_u32 s46, s46, 4096', None))
        g.append(('buffer_load_dwordx4 %s, %s, %s, s46 offen offset:%d sc1' % (A(AB + 4 * (s % NR)), vL16, S_WS, (s % 4) * 1024), ('act', s)))
        return g
    AH = 5
    for s in range(AH): emit_groups(a, [act_load(s)])
    lds_bases(a)
    def rd(s):
        b = WF + 20 * (s % 3)
        out = []
        for t in range(5):
            r, o = lds_pair(w2_lds(s) + t * 1024)
            out.append('ds_read_b128 %s, %s offset:%d' % (V(b + 4 * t), r, o))
        return out
    st = {'next': AH, 'ref': []}
    def hook(s):
        if os.environ.get('FINE') == 'ffn2' and s in (1, 4, 9, 14, 18, 24, 29, 33, 37, 42): G.stamp(a, 'f2_s%d' % s)
        lim = min(48, s + NR - 1); k = 0
        while s >= 1 and st['next'] < lim and k < (3 if s < 6 else 2 if s < 12 else 1):
            if 'noact' not in os.environ.get('EXP', ''): emit_groups(a, [act_load(st['next'])])
            st['next'] += 1; k += 1
        if s == 9:
            a('s_barrier'); st['ref'] = w2_quads(a, 31, 8, 'w2c')
        if s == 18:
            a('s_barrier'); st['ref'] += w2_quads(a, 39, 7, 'w2d', sreg='s77', lreg='s78') + w2_quads(a, 46, 2, 'w2d', sreg='s79', lreg='s36')
        if s >= 9:
            k = 0
            while st['ref'] and k < 2:
                g = st['ref'].pop(0); k += 1
                if 'noref' in os.environ.get('EXP', ''): continue
                emit_groups(a, [g])
        if s == 29:
            assert not any(x[1] == 'w2c' for g in st['ref'] for x in g)
            a.wait_vm_opt('w2c'); a('s_barrier')
        if s == 37:
            assert not st['ref']
            a.wait_vm_opt('w2d'); a('s_barrier')
    waits = {0: 0, 1: 1}
    waits.update({s: min(s + 1, 47) for s in range(2, 48, 2)})
    gemm5(a, 48, rd, lambda s: A(AB + 4 * (s % NR)), ACC, WF, waits, hook)
    G.stamp(a, 'ffn2_mfma')
    lf, ld = a.newlabel('F2_final'), a.newlabel('F2_done')
    pend = list(a.vm)
    a('s_cmp_eq_u32 %s, 0' % sP); a('s_cbranch_scc0 %s' % lf)
    a('s_mov_b32 s47, %d' % L.X2_[0])
    res_epilogue(a, ACC, 's47', None, False)
    signal(a, 'out', lambda: a('s_mov_b32 s43, 4'))
    a('s_branch %s' % ld)
    a.label(lf)
    a.vm = pend
    res_epilogue(a, ACC, None, None, True)
    a.wait_vm0()
    a.label(ld)
```

```python
import sys, os
sys.path.insert(0, os.path.dirname(os.path.abspath(__file__)))
sys.modules.setdefault('gen3', sys.modules[__name__])
from asmlib import Asm
import layout as L
import gen1 as G1
from gen1 import *
import phases3 as P

def build():
    a = Asm()
    setup(a)
    a('s_mov_b32 %s, 0' % sP)
    stamp(a, 'start')
    a('v_mov_b32 v5, 0x40000000'); a('v_mov_b32 v6, v2')
    P.start_flags(a)
    P.stage0(a)
    a.label('L_LAYER')
    P.qkv(a); stop_here(a, 1); stamp(a, 'qkv_end')
    P.attention(a); stop_here(a, 2); stamp(a, 'att_end')
    P.wo(a); stop_here(a, 3); stamp(a, 'wo_end')
    P.ffn1(a); stop_here(a, 4); stamp(a, 'ffn1_end')
    P.ffn2(a); stop_here(a, 5); stamp(a, 'ffn2_end')
    a('s_add_u32 %s, %s, 1' % (sP, sP))
    a('s_cmp_lt_u32 %s, 2' % sP)
    a('s_cbranch_scc1 L_LAYER')
    a.label('L_END')
    a('s_endpgm')
    return a

def emit(lds):
    a = build()
    body = a.render()
    s = HEADER + '; @launch grid=(256,1,1) block=(256,1,1) lds=%d\n' % lds
    s += '.amdgcn_target "amdgcn-amd-amdhsa--gfx950"\n.text\n.globl %s\n.p2align 8\n.type %s,@function\n%s:\n' % (KNAME, KNAME, KNAME)
    s += body
    s += '.section .rodata,"a"\n.p2align 6\n.amdhsa_kernel %s\n' % KNAME
    s += '  .amdhsa_next_free_vgpr 512\n  .amdhsa_next_free_sgpr 102\n  .amdhsa_accum_offset 256\n  .amdhsa_group_segment_fixed_size 0\n  .amdhsa_kernarg_size 104\n'
    s += '  .amdhsa_user_sgpr_count 2\n  .amdhsa_user_sgpr_kernarg_segment_ptr 1\n  .amdhsa_system_sgpr_workgroup_id_x 1\n.end_amdhsa_kernel\n'
    return s
if __name__ == '__main__':
    out = sys.argv[1] if len(sys.argv) > 1 else 'k3.s'
    open(out, 'w').write(emit(163840))
    if G1.PROF: open(out + '.stamps', 'w').write('\n'.join(G1.STAMP_NAMES))
    elif os.path.exists(out + '.stamps'): os.remove(out + '.stamps')
```
